```python
import torch

def _softmax(x, axis=-1):
    return torch.softmax(x, dim=axis)
def _gelu(x):
    return torch.nn.functional.gelu(x, approximate="tanh")
def _silu(x):
    return torch.nn.functional.silu(x)
def _sigmoid(x):
    return torch.sigmoid(x)
def _layernorm(x, axis=-1, eps=1e-5):
    m = x.mean(dim=axis, keepdim=True)
    v = x.var(dim=axis, keepdim=True, unbiased=False)
    return (x - m) / torch.sqrt(v + eps)
def _scatter_add(tgt, idx, src, axis=0):
    return tgt.clone().index_add_(axis, idx, src)
def _segment_sum(src, seg, n):
    out = torch.zeros((n,) + src.shape[1:], dtype=src.dtype)
    return out.index_add_(0, seg, src)
def _pad(x, pw):
    flat = tuple(v for pair in reversed(pw) for v in pair)
    return torch.nn.functional.pad(x, flat)

kernel_name = 'recurrent_scan__sliding_block_cached__dense_activation_relu__prompt'

def setup_inputs():

    _w = (lambda a: (lambda t: t.to(torch.bfloat16) if t.is_floating_point() else t)(torch.as_tensor(a)))
    def _A_setup():
        B, Sq, D = 1, 2048, 576
        Hq, Hkv, Sk, Dh = 32, 16, 2048, 128
        assert Hq % Hkv == 0, (Hq, Hkv)
        return {
            "x": _w((lambda *s: torch.randn(*s, dtype=torch.bfloat16) * 0.05)(B, Sq, D)),
            "k_cache": _w((lambda *s: torch.randn(*s, dtype=torch.bfloat16) * 0.8)(B, Hkv, Sk, Dh)),
            "v_cache": _w((lambda *s: torch.randn(*s, dtype=torch.bfloat16) * 0.2)(B, Hkv, Sk, Dh)),
            "wq": _w((lambda *s: torch.randn(*s, dtype=torch.bfloat16) * 0.8)(D, Hq * Dh) * (D ** -0.5)),
            "wo": _w((lambda *s: torch.randn(*s, dtype=torch.bfloat16) * 0.2)(Hq * Dh, D) * ((Hq * Dh) ** -0.5)),
        }
    _A_in = _A_setup()

    def _B_setup():
        B, S, D, Dff = 1, 2048, 576, 4608
        return {
            "x": _w((lambda *s: torch.randn(*s, dtype=torch.bfloat16) * 0.05)(B, S, D)),
            "w1": _w((lambda *s: torch.randn(*s, dtype=torch.bfloat16) * 0.1)(D, Dff)),
            "w2": _w((lambda *s: torch.randn(*s, dtype=torch.bfloat16) * 0.1)(Dff, D)),
        }
    _B_in = _B_setup()

    return {
        "A_x": _A_in["x"],
        "A_k_cache": _A_in["k_cache"],
        "A_v_cache": _A_in["v_cache"],
        "A_wq": _A_in["wq"],
        "A_wo": _A_in["wo"],
        "B_x": _B_in["x"],
        "B_w1": _B_in["w1"],
        "B_w2": _B_in["w2"],
    }

def reference(A_x, A_k_cache, A_v_cache, A_wq, A_wo, B_x, B_w1, B_w2):
    def _A_ref(x, k_cache, v_cache, wq, wo):
        B, Sq, D = x.shape
        Hq, Dh = 32, 128
        Hkv, Sk = k_cache.shape[1], k_cache.shape[2]
        W = min(4096, max(256, Sk // 4))
        rep = Hq // Hkv
        q = (lambda x, *d: x.permute(*d))((x @ wq).reshape(B, Sq, Hq, Dh), 0, 2, 1, 3)
        k = (lambda x, n, axis: torch.repeat_interleave(x, n, dim=axis))(k_cache[:, :, Sk - W:, :], rep, axis=1)
        v = (lambda x, n, axis: torch.repeat_interleave(x, n, dim=axis))(v_cache[:, :, Sk - W:, :], rep, axis=1)
        scores = torch.einsum("bhqd,bhkd->bhqk", q, k) * (Dh ** -0.5)
        p = _softmax(scores, axis=-1)
        o = torch.einsum("bhqk,bhkd->bhqd", p, v)
        return (lambda x, *d: x.permute(*d))(o, 0, 2, 1, 3).reshape(B, Sq, Hq * Dh) @ wo

    def _B_ref(x, w1, w2):
        h = torch.einsum("bsd,df->bsf", x, w1)
        zero = torch.zeros_like(h)
        h = torch.maximum(h, zero)
        return torch.einsum("bsf,fd->bsd", h, w2)

    x = A_x
    xn = _layernorm(x, axis=-1)
    s = _A_ref(xn, A_k_cache, A_v_cache, A_wq, A_wo)
    g = _silu(_B_ref(xn, B_w1, B_w2))
    return x + s * g
```

```python
from mainlib import *
import struct
NKF = 13; NKM = 5
SCALE = struct.unpack('<I', struct.pack('<f', (128 ** -0.5) * 1.4426950408889634))[0]
LTHR = 0x49800000

def w2seg(nk):
    return (PW2, SZ['w2'], 1152, False,
            f"s_lshl_b32 s{hT0}, s{sW}, 4\ns_add_u32 s{hT0}, s{hT0}, s{sHB}\ns_mul_i32 s{pOFF}, s{hT0}, 1152",
            64*1152, nk, 64 - (nk-1)*64*1152)

def phase_Qp4(ctx, m, bar_every=2):
    ctx.seg(72, PWQ, SZ['wq'], 8192, True,
            f"s_lshl_b32 s{pOFF}, s{sC}, 15\ns_add_u32 s{hT0}, s{sH0}, s{sR2}\ns_lshl_b32 s{hT0}, s{hT0}, 8\ns_add_u32 s{pOFF}, s{pOFF}, s{hT0}",
            32*8192, 18, 64 - 17*32*8192)
    NS = 4; stg = m['stg']; acc = m['acc1']; tm = m['qtmp']; Q = m['Q']
    bb = []; frags = []
    for j in range(18):
        for t in range(2):
            f = 2*j + t
            st = (stg[0], stg[1] + 4*(f % NS))
            u = len(bb)
            for rt in range(4):
                d = ('v', acc + 16*t + 4*rt)
                bb.append(mfma(d, st, xn_reg(m, rt, j), None if j == 0 else d))
            kk = j & 1
            reads = [I(f"ds_read_b64_tr_b16 {R2(st, h)}, v{vA0} offset:{kk*4096 + h*1024 + 8*t}", rq=('c', kk)) for h in range(2)]
            pre = []
            if f % 4 == 0:
                pre.append(ctx.stage_adv())
                g = Is(f"s_add_u32 s{cTMP}, s{cPOS}, s{sC2K}\nv_xor_b32 v{vA0}, s{cTMP}, v{vLPI}")
                g[1].meta['adv'] = [('c', 2)]
                pre.append(g)
                if (f // 4) % bar_every == 0: pre.append([bar()])
            frags.append(dict(u=u, n=4, reads=reads, pre=pre))
    body = Body(bb)
    place_frags(body, frags, NS, None)
    done = {}
    for k in range(8):
        a = acc + 4*k
        for h in range(2):
            mu = Is(f"v_mul_f32 v{tm+4*k+2*h}, s{sSCALE}, v{a+2*h}\nv_mul_f32 v{tm+4*k+2*h+1}, s{sSCALE}, v{a+2*h+1}")
            done[k] = body.fit(136 + k + 4, 144 + k - 1, mu)
    ctx.place_dma(body, 18, lo=8, hi=138)
    Qall = [f"v{Q+i}" for i in range(64)]
    g = 152
    for k in range(8):
        t, rt = k >> 2, k & 3
        dst = Q + 4*rt + 2*t
        cv = [I(f"s_set_gpr_idx_on s{sIDX}, gpr_idx(DST)"), I(f"v_cvt_pk_bf16_f32 v{dst}, v{tm+4*k}, v{tm+4*k+1}", wr=Qall),
              I(f"v_cvt_pk_bf16_f32 v{dst+1}, v{tm+4*k+2}, v{tm+4*k+3}", wr=Qall), I("s_set_gpr_idx_off")]
        g = body.fit(g, g + 10, cv)
    upd = Is(f"s_sub_u32 s{sIDX}, 4, s{CNT}\ns_lshl_b32 s{sIDX}, s{sIDX}, 4")
    body.fit(g + 1, g + 4, upd)
    ep = ctx.add_loop(body, 4, "Qp4", pre=Is(f"s_mov_b32 s{sIDX}, 0"))
    ep = [e for e in ep if e.kind == 'valu' or e.mn.startswith('s_set_gpr')]
    ctx.p.straight(ep, name="Qp4 epilogue")
    print(ctx.p.name, "Qp4 overload", body.over())

def phase_Qp2(ctx, m, bar_every=2):
    ctx.seg(36, PWQ, SZ['wq'], 8192, True,
            f"s_lshl_b32 s{pOFF}, s{sC}, 15\ns_lshl_b32 s{hT0}, s{sR2}, 18\ns_add_u32 s{pOFF}, s{pOFF}, s{hT0}\ns_lshl_b32 s{hT0}, s{sH3}, 8\ns_add_u32 s{pOFF}, s{pOFF}, s{hT0}",
            64*8192, 9, 64 - 8*64*8192)
    NS = 8; stg = m['stg']; acc = m['acc1']; tm = m['qtmp']; Q = m['Q3']
    bb = []; frags = []
    for s in range(2):
        for j in range(18):
            for t in range(2):
                f = (s*18 + j)*2 + t
                st = (stg[0], stg[1] + 4*(f % NS))
                u = len(bb)
                for rt in range(2):
                    d = ('v', acc + 16*s + 8*t + 4*rt)
                    bb.append(mfma(d, st, xn_reg(m, rt, j), None if j == 0 else d))
                kk = (s*18 + j) & 3
                reads = [I(f"ds_read_b64_tr_b16 {R2(st, h)}, v{vA0} offset:{kk*2048 + h*1024 + 8*t}", rq=('c', kk >> 1)) for h in range(2)]
                pre = []
                if f % 8 == 0:
                    pre.append(ctx.stage_adv())
                    g = Is(f"v_xor_b32 v{vA0}, s{cPOS}, v{vLPI}")
                    g[0].meta['adv'] = [('c', 2)]
                    pre.append(g)
                    if (f // 8) % bar_every == 0: pre.append([bar()])
                frags.append(dict(u=u, n=2, reads=reads, pre=pre))
    body = Body(bb)
    place_frags(body, frags, NS, None)
    ctx.place_dma(body, 18)
    Qall = [f"v{Q+i}" for i in range(32)]
    for s in range(2):
        g = 72*(s+1) + 4
        for k in range(4):
            t, rt = k >> 1, k & 1
            a = acc + 16*s + 4*k
            for e in range(4):
                g = body.fit(g + 1, g + 2, I(f"v_mul_f32 v{tm+e}, s{sSCALE}, v{a+e}"))
            dst = Q + 8*s + 4*rt + 2*t
            for h in range(2):
                cv = [I(f"s_set_gpr_idx_on s{sIDX}, gpr_idx(DST)"), I(f"v_cvt_pk_bf16_f32 v{dst+h}, v{tm+2*h}, v{tm+2*h+1}", wr=Qall), I("s_set_gpr_idx_off")]
                g = body.fit(g + 1, g + 2, cv)
        assert g < 72*(s+2) - 2
        if s == 1:
            body.fit(g + 1, g + 2, Is(f"s_sub_u32 s{sIDX}, 2, s{CNT}\ns_lshl_b32 s{sIDX}, s{sIDX}, 4"))
    ep = ctx.add_loop(body, 2, "Qp2", pre=Is(f"s_mov_b32 s{sIDX}, 0"))
    ep = [e for e in ep if e.kind == 'valu' or e.mn.startswith('s_set_gpr')]
    ctx.p.straight(ep, name="Qp2 epilogue")
    print(ctx.p.name, "Qp2 overload", body.over())

def rowmax_reduce(x, t):
    return Is(f"""v_mov_b32 v{t}, v{x}
v_permlane32_swap_b32 v{t}, v{x}
v_max_f32 v{x}, v{x}, v{t}
v_mov_b32 v{t}, v{x}
v_permlane16_swap_b32 v{t}, v{x}
v_max_f32 v{x}, v{x}, v{t}""")

def phase_At(ctx, m, nrt, shead, Q, name):
    kvoff = f"s_lshr_b32 s{hT0}, s{shead}, 1\ns_lshl_b32 s{hT0}, s{hT0}, 19\ns_lshl_b32 s{hT1}, s{sW}, 6\ns_add_u32 s{hT0}, s{hT0}, s{hT1}\ns_add_u32 s{pOFF}, s{hT0}, {1536*256 - 4096}"
    ctx.seg(64, PK, SZ['k'], 256, False, kvoff, 4096, 2, 0, dxptr=PV, baseadd=4096)
    NS = 4 if nrt == 4 else 8
    stg = m['astg']; Sb = m['S']; Pb = m['P']; NM = m['negm']; ONES = m['ones']; Ob = 0; Lb = 128; T = m['atmp']
    S = lambda kt, rt: ('v', Sb + 4*(kt*nrt + rt))
    P = lambda par, rt: ('v', Pb + 16*par + 4*rt)
    Qf = lambda j, rt: ('v', Q + 4*(j*nrt + rt))
    O = lambda dt, rt: ('a', Ob + 4*(dt*nrt + rt))
    L = lambda rt: ('a', Lb + 4*rt)
    neg = lambda rt: ('v', NM + 4*rt)
    def kread(st, kt, j, **kw):
        return I(f"ds_read_b128 {R4(st)}, v{vA2} offset:{kt*4096 + j*1024}", rq=('c', kt), **kw)
    def vreads(st, dt):
        a = vA0 if dt % 2 == 0 else vA1
        return [I(f"ds_read_b64_tr_b16 {R2(st, h)}, v{a} offset:{h*4096 + (dt >> 1)*1024}", rq=('v', h)) for h in range(2)]
    Hn = 17*nrt
    bb = []; frags = []
    f = 0
    for hb in range(2):
        for kt in range(2):
            for j in range(4):
                st = (stg[0], stg[1] + 4*(f % NS)); u = len(bb)
                for rt in range(nrt):
                    i = mfma(S(kt, rt), st, Qf(j, rt), neg(rt) if j == 0 else S(kt, rt)); i.meta['w'] = 'qk'; bb.append(i)
                pre = []
                if kt == 0 and j == 0:
                    pre.append(ctx.stage_adv(cPOS, 16384))
                    g = Is(f"v_xor_b32 v{vA2}, s{cPOS}, v{vLPK}"); g[0].meta['adv'] = [('c', 4)]
                    pre.append(g); pre.append([bar()])
                    for grp in pre:
                        for i in grp: i.meta['w'] = 'k'; i.meta.pop('noprol', None); i.meta['keepadv'] = True
                r = kread(st, kt, j); r.meta['w'] = 'k'; r.meta['khalf'] = hb
                frags.append(dict(u=u, n=nrt, reads=[r], pre=pre)); f += 1
        for rt in range(nrt):
            i = mfma(L(rt), ('v', ONES), P(hb, rt), L(rt)); i.meta['w'] = 'pv'; bb.append(i)
        for dt in range(8):
            st = (stg[0], stg[1] + 4*(f % NS)); u = len(bb)
            for rt in range(nrt):
                i = mfma(O(dt, rt), st, P(hb, rt), O(dt, rt)); i.meta['w'] = 'pv'; bb.append(i)
            pre = []
            if dt == 0:
                pre.append(ctx.stage_adv(cPOS2, 16384))
                g = Is(f"v_xor_b32 v{vA0}, s{cPOS2}, v{vLPN}\nv_xor_b32 v{vA1}, 32, v{vA0}"); g[0].meta['adv'] = [('v', 4)]
                pre.append(g)
                for grp in pre:
                    for i in grp: i.meta['w'] = 'v'
            rs = vreads(st, dt)
            for r in rs: r.meta['w'] = 'v'
            frags.append(dict(u=u, n=nrt, reads=rs, pre=pre)); f += 1
    body = Body(bb)
    n = body.n
    place_frags(body, frags, NS, None)
    ctx.place_dma(body, 4, lo=0, hi=Hn - 1)
    ctx.place_dma(body, 4, lo=Hn, hi=n - 1)
    for hb in (1, 0):
        B0 = hb*Hn; par = (hb + 1) & 1
        for kt in range(2):
            for rt in range(nrt):
                s = S(kt, rt)[1]
                lo = B0 + kt*4*nrt + 3*nrt + rt + 4
                hi = min(B0 + Hn + kt*4*nrt + rt - 1, B0 + Hn + 8*nrt - 3)
                k = kt*nrt + rt
                lo2 = max(lo, B0 + 4*nrt + (k*Hn)//(2*nrt) - 4)
                hi2 = min(hi - 1, lo2 + Hn//(2*nrt) + 6)
                for h in range(2):
                    gs = []
                    for e in range(2):
                        i = I(f"v_exp_f32 v{s+2*h+e}, v{s+2*h+e}", w='e', eh=hb)
                        gs.append(body.fit(lo2, hi2, i))
                    i = I(f"v_cvt_pk_bf16_f32 v{P(par, rt)[1] + 2*kt + h}, v{s+2*h}, v{s+2*h+1}", w='e', eh=hb)
                    body.fit(max(gs) + 1, min(hi, max(gs) + 8), i)
    print(ctx.p.name, name, "overload", body.over(), "n", n)
    lin0 = []; lin1 = []
    for i, mm in enumerate(bb):
        (lin0 if i < Hn else lin1).extend([mm] + body.gaps[i])
    for i in lin0:
        if i.meta.get('khalf') == 1: i.meta['junk_last'] = True
    label = ctx.lab(name); lexit = ctx.lab(name + "x")
    pr = Is(f"v_xor_b32 v{vA2}, s{cPOS}, v{vLPK}\ns_sub_u32 s{cPOS2}, s{cPOS}, 8192")
    pr[1].meta['setptr'] = [('v', lambda p: p['c'] - 2)]
    pr.append(bar())
    fr = [(kt, j) for kt in range(2) for j in range(4)]
    pst = lambda k: (stg[0], stg[1] + 4*(k % NS))
    for k in range(min(NS, 8)): pr.append(kread(pst(k), *fr[k]))
    for e in range(4): pr.append(I(f"v_mov_b32 v{ONES+e}, 0x3f803f80"))
    zero = [I(f"v_accvgpr_write_b32 a{Ob+i}, 0") for i in range(32*nrt)] + [I(f"v_accvgpr_write_b32 a{Lb+i}, 0") for i in range(4*nrt)]
    chain = []
    for rt in range(nrt):
        s = S(0, rt)[1]; x = T + rt
        chain += Is(f"v_max3_f32 v{x}, v{s}, v{s+1}, v{s+2}\nv_max_f32 v{x}, v{x}, v{s+3}")
    rm = [rowmax_reduce(T + rt, T + 4 + rt) for rt in range(nrt)]
    for k in range(6):
        for rt in range(nrt): chain.append(rm[rt][k])
    for rt in range(nrt):
        for e in range(4): chain.append(I(f"v_sub_f32 v{NM+4*rt+e}, 0, v{T+rt}"))
    pr += zero[:24]; zero = zero[24:]
    for k, (kt, j) in enumerate(fr):
        for rt in range(nrt):
            pr.append(mfma(S(kt, rt), pst(k), Qf(j, rt), None if j == 0 else S(kt, rt)))
            src = zero if (kt == 0 or j == 0) else chain
            pr += src[:3]; del src[:3]
        if k + NS < 8: pr.append(kread(pst(k + NS), *fr[k + NS]))
    pr += chain + zero
    for kt in range(2):
        for rt in range(nrt):
            s = S(kt, rt)[1]
            for e in range(4): pr.append(I(f"v_add_f32 v{s+e}, v{s+e}, v{NM+4*rt}"))
    for i in lin1:
        if i.tag == 1 or (i.meta.get('w') == 'e' and i.meta.get('eh') == 1):
            c = i.clone(); c.meta.pop('junk_last', None); pr.append(c)
    pr.append(I(f"s_mov_b32 s{CNT}, 8"))
    ctx.p.straight(pr, name=name + " prologue")
    ep = []
    hooks = {}
    for i in lin1:
        w = i.meta.get('w')
        if w in ('qk', 'k') or (w == 'e' and i.meta['eh'] == 1): continue
        c = i.clone()
        if i.meta.get('hook'): hooks['h'] = c
        if 'hookins' in i.meta: c.meta['hookins'] = hooks['h']
        ep.append(c)
    ex = Is(f"s_cmp_eq_u32 s{CNT}, 1\ns_cbranch_scc1 {lexit}")
    ex[1].meta['exit_last'] = True
    end = Is(f"s_sub_u32 s{CNT}, s{CNT}, 1\ns_branch {label}")
    ctx.p.loop(lin0 + ex + lin1 + end, 8, label, name=name)
    lslow = ctx.lab(name + "slow"); lnorm = ctx.lab(name + "norm")
    ep = [I(f"{lexit}:")] + ep
    for rt in range(nrt):
        ep.append(I(f"v_accvgpr_read_b32 v{T+rt}, a{Lb+4*rt}"))
    if nrt == 4: ep += Is(f"v_max3_f32 v{T+4}, v{T}, v{T+1}, v{T+2}\nv_add_f32 v{T+5}, v{T}, v{T+1}\nv_add_f32 v{T+4}, v{T+2}, v{T+3}\nv_add_f32 v{T+4}, v{T+4}, v{T+5}")
    else: ep += Is(f"v_add_f32 v{T+4}, v{T}, v{T+1}")
    ep += Is(f"v_cmp_ngt_f32 vcc, {LTHR}, v{T+4}\ns_nop 4\ns_cbranch_vccnz {lslow}")
    ep.append(I(f"{lnorm}:"))
    for rt in range(nrt):
        ep += Is(f"v_accvgpr_read_b32 v{T+rt}, a{Lb+4*rt}")
    for rt in range(nrt):
        ep += Is(f"v_rcp_f32 v{T+rt}, v{T+rt}")
    for dt in range(8):
        for rt in range(nrt):
            o = O(dt, rt)[1]; tt = T + 4 + 4*((dt*nrt + rt) & 1)
            for e in range(4): ep.append(I(f"v_accvgpr_read_b32 v{tt+e}, a{o+e}"))
            for e in range(4): ep.append(I(f"v_mul_f32 v{tt+e}, v{tt+e}, v{T+rt}"))
            d = Q + 4*((dt >> 1)*nrt + rt) + 2*(dt & 1)
            ep += Is(f"v_cvt_pk_bf16_f32 v{d}, v{tt}, v{tt+1}\nv_cvt_pk_bf16_f32 v{d+1}, v{tt+2}, v{tt+3}")
    ctx.p.straight(ep, name=name + " epilogue")
    sp = Program(ctx.p.name + "slow")
    so, sl = sSL + 4, sSL + 5
    vD, vK, vV0, vV1 = T + 12, T + 13, T + 14, T + 15
    head = Is(f"""{lslow}:
s_waitcnt vmcnt(0) lgkmcnt(0)
s_nop 7
s_mov_b32 s{sSL+2}, {SZ['k']}
s_mov_b32 s{sSL+3}, 0x00020000
s_lshl_b32 s{sl}, s{sW}, 14
s_add_u32 s{sl}, s{sl}, {AUX}
v_lshrrev_b32 v{vK}, 2, v{vLANE}
v_lshlrev_b32 v{vK}, 8, v{vK}
v_lshrrev_b32 v{vD}, 4, v{vLANE}
v_sub_u32 v{vD}, 0, v{vD}
v_xor_b32 v{vD}, v{vD}, v{vLANE}
v_and_b32 v{vD}, 3, v{vD}
v_lshl_add_u32 v{vD}, v{vD}, 4, v{vK}
v_add_u32 v{vK}, s{sl}, v{vLPK}
v_add_u32 v{vV0}, s{sl}, v{vLPN}
v_xor_b32 v{vV1}, 32, v{vV0}
""")
    initoff = f"s_lshr_b32 s{so}, s{shead}, 1\ns_lshl_b32 s{so}, s{so}, 19\ns_add_u32 s{so}, s{so}, {1536*256}\ns_mov_b32 s{CNT}, 16"
    head += Is(initoff)
    for rt in range(nrt): head.append(I(f"v_mov_b32 v{T+rt}, 0xff800000"))
    sp.straight(head, name="slow head")
    def sdma(ptr, ldsoff):
        out = Is(f"s_mov_b64 s[{sSL}:{sSL+1}], s[{ptr}:{ptr+1}]")
        for kt in range(2):
            for j in range(4):
                out += Is(f"s_add_u32 m0, s{sl}, {ldsoff + kt*4096 + j*1024}\ns_add_u32 s{sTMP}, s{so}, {kt*4096 + j*64}")
                out.append(I(f"buffer_load_dwordx4 v{vD}, s[{sSL}:{sSL+3}], s{sTMP} offen lds", ringdma=False))
        return out
    def sqk(c0):
        out = []
        for kt in range(2):
            for j in range(4):
                out.append(I(f"ds_read_b128 {R4(pst(j))}, v{vK} offset:{kt*4096 + j*1024}"))
            for j in range(4):
                for rt in range(nrt):
                    out.append(mfma(S(kt, rt), pst(j), Qf(j, rt), c0(rt) if j == 0 else S(kt, rt)))
        return out
    tail = lambda l: Is(f"s_add_u32 s{so}, s{so}, 8192\ns_sub_u32 s{CNT}, s{CNT}, 1\ns_cmp_lg_u32 s{CNT}, 0\ns_cbranch_scc1 {l}")
    l1 = ctx.lab("sl"); l2 = ctx.lab("sl")
    b1 = sdma(PK, 0) + [I("s_waitcnt vmcnt(0)")] + sqk(lambda rt: None)
    for kt in range(2):
        for rt in range(nrt):
            s = S(kt, rt)[1]
            b1 += Is(f"v_max3_f32 v{T+rt}, v{T+rt}, v{s}, v{s+1}\nv_max3_f32 v{T+rt}, v{T+rt}, v{s+2}, v{s+3}")
    sp.loop(b1 + tail(l1), 2, l1, name="slow max")
    mid = []
    for rt in range(nrt):
        mid += rowmax_reduce(T + rt, T + 4)
        for e in range(4): mid.append(I(f"v_sub_f32 v{NM+4*rt+e}, 0, v{T+rt}"))
    mid += [I(f"v_accvgpr_write_b32 a{Ob+i}, 0") for i in range(32*nrt)] + [I(f"v_accvgpr_write_b32 a{Lb+i}, 0") for i in range(4*nrt)]
    mid += Is(initoff)
    sp.straight(mid, name="slow mid")
    b2 = sdma(PK, 0) + sdma(PV, 8192) + [I("s_waitcnt vmcnt(0)")] + sqk(neg)
    for kt in range(2):
        for rt in range(nrt):
            s = S(kt, rt)[1]
            for e in range(4): b2.append(I(f"v_exp_f32 v{s+e}, v{s+e}"))
            for h in range(2): b2.append(I(f"v_cvt_pk_bf16_f32 v{P(0, rt)[1] + 2*kt + h}, v{s+2*h}, v{s+2*h+1}"))
    for rt in range(nrt): b2.append(mfma(L(rt), ('v', ONES), P(0, rt), L(rt)))
    for dt in range(8):
        a = vV0 if dt % 2 == 0 else vV1
        st = pst(dt)
        for h in range(2): b2.append(I(f"ds_read_b64_tr_b16 {R2(st, h)}, v{a} offset:{8192 + h*4096 + (dt >> 1)*1024}"))
        for rt in range(nrt): b2.append(mfma(O(dt, rt), st, P(0, rt), O(dt, rt)))
    sp.loop(b2 + tail(l2), 2, l2, name="slow attn")
    sp.straight(Is(f"s_nop 7\ns_nop 7\ns_branch {lnorm}"), name="slow end")
    analyze(sp, R); hazards(sp)
    ctx.p.ool += emit(sp)

def Bf(base, nrt, u):
    return lambda rt: ('v', base + 4*(u*nrt + rt))

def prog_TM(L):
    ctx = Ctx("TM", special=False, dx=True)
    m = dict(xnv=12, Q=44, H=108, nH=NKM, acc1=188, qtmp=108, stg=('v', 220), NS=4, tmp=244,
             S=12, P=188, negm=220, ones=236, atmp=240, astg=('a', 144),
             NS2=4, stg2=('a', 144), acc2=[12, 188], rcv=220, pk=236)
    prologue(ctx, f"""s_sub_u32 s{sTMP}, s{sROLE}, 8
s_mul_i32 s{sHB}, s{sTMP}, {NKM*64}
s_add_u32 s{sHB}, s{sHB}, {4*NKF*64}
s_add_u32 s{sPY}, s{sTMP}, {NP_S}
s_mov_b32 s{sPS}, s{sROLE}
s_lshl_b32 s{sH0}, s{sTMP}, 1
s_add_u32 s{sH0}, s{sH0}, 24
s_mov_b32 s{sSCALE}, {SCALE}""")
    phase_X(ctx, m, L)
    phase_Qp4(ctx, m)
    phase_F1(ctx, m, NKM, 0)
    phase_At(ctx, m, 4, sH0, m['Q'], "At4")
    woseg = (PWO, SZ['wo'], 1152, False,
             f"s_add_u32 s{hT0}, s{sH0}, s{sC}\ns_lshl_b32 s{hT0}, s{hT0}, 7\ns_lshl_b32 s{hT1}, s{sR2}, 4\ns_add_u32 s{hT0}, s{hT0}, s{hT1}\ns_mul_i32 s{pOFF}, s{hT0}, 1152",
             32*1152, 4, 64 - 3*32*1152)
    phase_G2(ctx, m, [[(Bf(m['Q'], 4, u), 4, 0, True)] for u in range(4)], woseg, sPS, "G2s")
    phase_G2(ctx, m, [[(Bf(m['H'], 4, u), 4, 0, True)] for u in range(NKM)], w2seg(NKM), sPY, "G2y")
    ctx.seg(1000, None, 0, 0, 0, 0, 0, 0, 0)
    ctx.p.straight(Is("s_endpgm"), name="end")
    return ctx.finish()

def prog_T3(L):
    ctx = Ctx("T3", special=True, dx=True)
    m = dict(xnv=12, Q=44, Q3=108, acc1=188, qtmp=140, stg=('v', 220), NS=4,
             S=12, P=188, negm=220, ones=236, atmp=240, astg=('a', 144),
             NS2=8, stg2=('a', 144), acc2=[12, 188], rcv=220, pk=236)
    prologue(ctx, f"""s_lshr_b32 s{sTMP}, s{sROLE}, 1
s_mul_i32 s{sTMP}, s{sTMP}, 6
s_and_b32 s{hT0}, s{sROLE}, 1
s_lshl_b32 s{hT1}, s{hT0}, 2
s_add_u32 s{sH0}, s{sTMP}, s{hT1}
s_add_u32 s{sH3}, s{sTMP}, 2
s_add_u32 s{sH3}, s{sH3}, s{hT0}
s_mov_b32 s{sPS}, s{sROLE}
s_mov_b32 s{sSCALE}, {SCALE}""")
    phase_X(ctx, m, L)
    phase_Qp4(ctx, m)
    phase_Qp2(ctx, m)
    phase_At(ctx, m, 4, sH0, m['Q'], "At4")
    phase_At(ctx, m, 2, sH3, m['Q3'], "At2")
    off = f"""s_lshl_b32 s{hT0}, s{sH3}, 7
s_lshl_b32 s{hT1}, s{sC}, 6
s_add_u32 s{hT0}, s{hT0}, s{hT1}
s_lshl_b32 s{hT1}, s{sR2}, 4
s_add_u32 s{hT0}, s{hT0}, s{hT1}
s_mul_i32 s{pOFF}, s{hT0}, 1152
s_add_u32 s{hT0}, s{sH0}, s{sC}
s_lshl_b32 s{hT0}, s{hT0}, 7
s_add_u32 s{hT0}, s{hT0}, s{hT1}
s_mul_i32 s{hT0}, s{hT0}, 1152
s_sub_u32 s{hT0}, s{hT0}, s{pOFF}"""
    incw = f"s_sub_u32 s{pINCW}, {(64 - 96*1152) & 0xffffffff}, s{hT0}"
    incs = f"s_sub_u32 s{pINCS}, s{hT0}, {32*1152}"
    woseg = (PWO, SZ['wo'], 1152, False, off, 32*1152, 6, incw, incs, 4)
    ks = [[(Bf(m['Q3'], 2, u), 2, 0, False), (Bf(m['Q3'], 2, u + 2), 2, 1024, False)] for u in range(2)]
    ks += [[(Bf(m['Q'], 4, u), 4, 0, True)] for u in range(4)]
    phase_G2(ctx, m, ks, woseg, sPS, "G2s")
    ctx.seg(1000, None, 0, 0, 0, 0, 0, 0, 0)
    ctx.p.straight(Is("s_endpgm"), name="end")
    return ctx.finish()
```

```python
from core import *
NAME = "recurrent_scan__sliding_block_cached__dense_activation_relu__prompt"
D = 576; S = 2048; DFF = 4608
XN_OFF = 0
PART_OFF = 4 << 20
PSZ = 147456
NP_S = 12; NP_Y = 8; NP = NP_S + NP_Y
WS_USED = PART_OFF + 16 * NP * PSZ
KA = dict(x=0, k=8, v=16, wq=24, wo=32, bx=40, w1=48, w2=56, out=64, dbg=72, ws=80)
SZ = dict(x=S*D*2, k=16*2048*128*2, v=16*2048*128*2, wq=D*4096*2, wo=4096*D*2, w1=D*DFF*2, w2=DFF*D*2, out=S*D*2)

def desc(name, vgpr, sgpr, accum):
    return f""".amdhsa_kernel {name}
  .amdhsa_next_free_vgpr {vgpr}
  .amdhsa_next_free_sgpr {sgpr}
  .amdhsa_accum_offset {accum}
  .amdhsa_group_segment_fixed_size 0
  .amdhsa_kernarg_size 88
  .amdhsa_user_sgpr_count 2
  .amdhsa_user_sgpr_kernarg_segment_ptr 1
  .amdhsa_system_sgpr_workgroup_id_x 1
.end_amdhsa_kernel"""

def simple_kernel(name, text):
    p = Program(name)
    p.straight(Is(text), name=name)
    analyze(p, 1)
    hazards(p)
    return emit(p)
```

```python
import re

def expand(op):
    op = op.strip()
    neg = op.lstrip('-')
    if neg.startswith('abs(') or neg.startswith('|'):
        neg = neg.replace('abs(', '').replace(')', '').replace('|', '')
    op = neg
    m = re.fullmatch(r'([vas])\[(\d+):(\d+)\]', op)
    if m:
        return [f"{m.group(1)}{i}" for i in range(int(m.group(2)), int(m.group(3)) + 1)]
    if re.fullmatch(r'[vas]\d+', op):
        return [op]
    if op in ('vcc', 'exec'):
        return [op]
    if op in ('m0', 'scc', 'vcc_lo', 'vcc_hi', 'exec_lo', 'exec_hi'):
        return [op[:4] if op.startswith('exec') else op[:3] if op.startswith('vcc') else op]
    return []

TRANS = ('v_exp_f32', 'v_rcp_f32', 'v_rsq_f32', 'v_sqrt_f32', 'v_log_f32')
SCC_W = ('s_add_', 's_sub_', 's_and_', 's_or_', 's_xor_', 's_lshl_', 's_lshr_', 's_cmp_', 's_addc', 's_subb', 's_min_', 's_max_', 's_andn2', 's_not', 's_bfe', 's_ashr', 's_addk', 's_cmpk', 's_lshl1', 's_lshl2', 's_lshl3', 's_lshl4', 's_bitcmp')

class I:
    __slots__ = ('text', 'kind', 'rd', 'wr', 'A', 'B', 'C', 'cost', 'tag', 'meta', 'w_lgkm', 'w_vm', 'nop', 'mn', 'pre', 'dpp')
    def __init__(self, text, tag=0, wr=None, rd=None, **meta):
        self.text = text.strip()
        self.tag = tag
        self.meta = meta
        self.w_lgkm = None; self.w_vm = None; self.nop = 0
        self.pre = []
        self.A = self.B = self.C = []
        t = self.text.split(';')[0].strip()
        if t.endswith(':'):
            self.kind = 'label'; self.rd = []; self.wr = []; self.cost = 0; self.mn = ''; self.dpp = False
            return
        parts = t.split(None, 1)
        mn = parts[0]; self.mn = mn
        rest = parts[1] if len(parts) > 1 else ''
        ops = [o.strip() for o in re.split(r',(?![^\[\(]*[\]\)])', rest)] if rest else []
        mods = ''
        if ops:
            lp = ops[-1].split(None, 1)
            if len(lp) > 1 and not ops[-1].startswith('gpr_idx') and not ops[-1].startswith('hwreg'):
                ops[-1] = lp[0]; mods = lp[1]
        self.dpp = ('row_' in mods or 'quad_perm' in mods)
        R = []; W = []
        E = [expand(o) for o in ops]
        if mn.startswith('v_mfma'):
            self.kind = 'mfma'; W = E[0]; self.A = E[1]; self.B = E[2]; self.C = E[3]; R = E[1] + E[2] + E[3]; self.cost = 8
        elif mn.startswith('ds_read') or mn.startswith('ds_bpermute') or mn.startswith('ds_swizzle'):
            self.kind = 'ldsr'; W = E[0]; R = sum(E[1:], []); self.cost = 8
        elif mn.startswith('ds_write'):
            self.kind = 'ldsw'; R = sum(E, []); self.cost = 8
        elif mn.startswith('buffer_load'):
            if re.search(r'\blds\b', mods):
                self.kind = 'dma'; R = sum(E, []) + ['m0']
            else:
                self.kind = 'vload'; W = E[0]; R = sum(E[1:], [])
            self.cost = 8
        elif mn.startswith('buffer_store'):
            self.kind = 'vstore'; R = sum(E, []); self.cost = 8
        elif mn.startswith('buffer_atomic'):
            self.kind = 'vstore'; R = sum(E, []); self.cost = 8
            if 'sc0' in mods: self.kind = 'vload'; W = E[0]
        elif mn.startswith('buffer_'):
            self.kind = 'vstore'; self.cost = 8
        elif mn.startswith('v_'):
            self.kind = 'trans' if mn.replace('_e32', '').replace('_e64', '') in TRANS else 'valu'
            self.cost = 8 if self.kind == 'trans' else 4
            if mn.startswith('v_permlane'):
                W = E[0] + E[1]; R = E[0] + E[1]; self.cost = 8
            elif mn.startswith('v_cmp'):
                W = E[0]; R = sum(E[1:], [])
            elif mn.startswith('v_add_co') or mn.startswith('v_addc_co'):
                W = E[0] + E[1]; R = sum(E[2:], [])
            elif mn == 'v_nop':
                pass
            else:
                W = E[0]; R = sum(E[1:], [])
                if mn.startswith('v_fmac') or mn.startswith('v_dot2c') or self.dpp: R = R + E[0]
        elif mn == 's_barrier':
            self.kind = 'bar'; self.cost = 0
        elif mn == 's_waitcnt':
            self.kind = 'wait'; self.cost = 0
        elif mn == 's_nop':
            self.kind = 'nop'; self.cost = 0
        elif mn.startswith('s_cbranch') or mn == 's_branch' or mn == 's_endpgm':
            self.kind = 'branch'; self.cost = 0
            if 'scc' in mn: R = ['scc']
            if 'vcc' in mn: R = ['vcc']
            if 'exec' in mn: R = ['exec']
        elif mn.startswith('s_load') or mn.startswith('s_memtime') or mn.startswith('s_memrealtime'):
            self.kind = 'smem'; W = E[0]; R = sum(E[1:], []); self.cost = 0
        elif mn.startswith('s_'):
            self.kind = 'salu'; self.cost = 0
            if mn.startswith('s_cmp') or mn.startswith('s_bitcmp'):
                R = sum(E, []); W = ['scc']
            elif mn == 's_set_gpr_idx_on':
                R = E[0]; W = ['m0']
            elif mn in ('s_set_gpr_idx_off', 's_setprio', 's_sleep'):
                pass
            else:
                W = list(E[0]); R = sum(E[1:], [])
                if mn.startswith('s_cselect') or mn.startswith('s_addc') or mn.startswith('s_subb'): R = R + ['scc']
                if any(mn.startswith(p) for p in SCC_W): W = W + ['scc']
                if 'saveexec' in mn: W = W + ['exec', 'scc']; R = R + ['exec']
                if mn.startswith('s_addk'): R = R + E[0]
        else:
            raise ValueError("unknown instr " + text)
        self.rd = R if rd is None else rd
        self.wr = W if wr is None else wr
    def clone(self):
        c = I(self.text, self.tag, wr=list(self.wr), rd=list(self.rd), **dict(self.meta))
        return c
    def __repr__(self):
        return f"<{self.text}>"

def Is(s, **kw):
    return [I(l, **kw) for l in s.strip().split('\n') if l.strip() and not l.strip().startswith(';')]

class Body:
    def __init__(self, backbone, cap=8):
        self.bb = backbone
        self.n = len(backbone)
        self.gaps = [[] for _ in range(self.n)]
        self.load = [0] * self.n
        self.sload = [0] * self.n
        self.cap = cap
    def put(self, g, group, base_tag=None):
        if isinstance(group, I): group = [group]
        w = g // self.n
        gg = g % self.n
        for ins in group:
            ins.tag = ins.tag - w
            self.gaps[gg].append(ins)
            if ins.cost: self.load[gg] += ins.cost
            else: self.sload[gg] += 1
        return g
    def fit(self, lo, hi, group, late=False):
        if isinstance(group, I): group = [group]
        c = sum(i.cost for i in group)
        sc = sum(1 for i in group if not i.cost)
        rng = list(range(lo, hi + 1))
        if late: rng.reverse()
        best = None
        for g in rng:
            gg = g % self.n
            if c:
                if self.load[gg] + c <= self.cap and self.sload[gg] + sc <= 4:
                    return self.put(g, group)
                key = (self.load[gg], self.sload[gg])
            else:
                if self.sload[gg] + sc <= 4:
                    return self.put(g, group)
                key = (self.sload[gg], self.load[gg])
            if best is None or key < best[0]: best = (key, g)
        return self.put(best[1], group)
    def linear(self):
        out = []
        for i, m in enumerate(self.bb):
            out.append(m)
            out.extend(self.gaps[i])
        return out
    def over(self):
        return sum(max(0, l - self.cap) for l in self.load)

class Block:
    def __init__(self, ins, loop=1, label=None, cnt=None, exit_at=None, name=''):
        self.ins = ins; self.loop = loop; self.label = label; self.cnt = cnt; self.exit_at = exit_at; self.name = name
        self.loop_is = label is not None

class Program:
    def __init__(self, name):
        self.name = name
        self.blocks = []
        self.ool = []
    def straight(self, ins, name=''):
        self.blocks.append(Block(list(ins), name=name))
    def loop(self, ins, count, label, name=''):
        self.blocks.append(Block(list(ins), loop=count, label=label, name=name))
    def trace(self):
        for b in self.blocks:
            for it in range(b.loop):
                for ins in b.ins:
                    yield ins, it, b
                    if ins.meta.get('exit_last') and it == b.loop - 1:
                        break

def analyze(prog, R, verbose=False):
    lds = []
    vm = []
    nq = 0
    q_issue_pos = {}
    ldsid = 0
    nbar = 0
    last_read_bar = {}
    landed = -1
    cons = {}
    tr = list(prog.trace())
    ptr = {}
    reads_q = [None] * len(tr)
    for k, (ins, it, b) in enumerate(tr):
        for (p, v) in ins.meta.get('setptr', []): ptr[p] = v(ptr) if callable(v) else v
        for (p, d) in ins.meta.get('adv', []): ptr[p] = ptr.get(p, 0) + d
        if 'rq' in ins.meta:
            p, d = ins.meta['rq']
            junk = ins.meta.get('junk_last') and it == b.loop - 1 and b.loop_is
            reads_q[k] = None if junk else ptr[p] + d
    need = [None] * len(tr)
    cur = -1
    for k in range(len(tr) - 1, -1, -1):
        ins = tr[k][0]
        if reads_q[k] is not None: cur = max(cur, reads_q[k])
        if ins.kind == 'bar' and ins.meta.get('ring', True):
            need[k] = cur; cur = -1
    assert cur == -1, "reads before first barrier"
    def setmin(ins, attr, val):
        old = getattr(ins, attr)
        setattr(ins, attr, val if old is None else min(old, val))
    pend_ldsw = []
    switches = []
    for k, (ins, it, b) in enumerate(tr):
        skip = ins.meta.get('active') is not None and not ins.meta['active'](it)
        regs = set(ins.rd) | set(ins.wr)
        idx = None
        for j, (o, w) in enumerate(lds):
            if w & regs: idx = j
        if ins.kind == 'bar' and ins.meta.get('drain_w'):
            for j, (o, w) in enumerate(lds):
                if o.kind == 'ldsw' and o.meta.get('pub'): idx = j if idx is None else max(idx, j)
        if ins.kind in ('branch',) and ins.meta.get('drain'):
            idx = len(lds) - 1 if lds else None
        if idx is not None:
            n = len(lds) - 1 - idx
            n = min(n, 15)
            setmin(ins, 'w_lgkm', n)
            lds = lds[len(lds) - n:] if n else []
        idx = None
        for j, (o, w, q) in enumerate(vm):
            if w & regs: idx = j
            if ins.kind == 'bar' and need[k] is not None and q is not None and q <= need[k]: idx = j
        if ins.kind == 'bar' and need[k] is not None and need[k] >= 0:
            assert need[k] < nq, f"{prog.name}: barrier needs quantum {need[k]} but only {nq} issued (block {b.name} it {it})"
        if idx is not None:
            n = len(vm) - 1 - idx
            n = min(n, 63)
            setmin(ins, 'w_vm', n)
            vm = vm[len(vm) - n:] if n else []
        if ins.kind == 'wait':
            m = re.search(r'lgkmcnt\((\d+)\)', ins.text)
            if m:
                n = int(m.group(1)); lds = lds[len(lds) - n:] if n else []
            m = re.search(r'vmcnt\((\d+)\)', ins.text)
            if m:
                n = int(m.group(1)); vm = vm[len(vm) - n:] if n else []
        if ins.kind == 'bar': nbar += 1
        if reads_q[k] is not None:
            last_read_bar[reads_q[k]] = nbar
        if skip: continue
        if ins.kind in ('ldsr', 'ldsw'):
            lds.append((ins, set(ins.wr)))
        elif ins.kind == 'dma':
            if ins.meta.get('ringdma', True):
                old = nq - R
                if old >= 0:
                    lb = last_read_bar.get(old)
                    if lb is not None:
                        assert nbar - lb >= 2, f"{prog.name}: ring WAR: quantum {nq} overwrites {old} read {nbar-lb} barriers ago (block {b.name} it {it})"
                    q_issue_pos[old] = k
                switches.append((nq, ins, it, b))
                vm.append((ins, set(), nq)); nq += 1
            else:
                vm.append((ins, set(), None))
        elif ins.kind in ('vload', 'vstore'):
            vm.append((ins, set(ins.wr), None))
    for k, q in enumerate(reads_q):
        if q is not None and q in q_issue_pos:
            assert k < q_issue_pos[q], f"{prog.name}: read of quantum {q} after overwrite"
    prog.nq = nq
    prog.dma_sites = switches
    maxq = max([q for q in reads_q if q is not None], default=-1)
    prog.maxq = maxq
    return tr

def hazards(prog):
    tr = list(prog.trace())
    hist = []
    pos = 0
    total_nops = 0
    for k, (ins, it, b) in enumerate(tr):
        if ins.kind == 'label': continue
        extra = (1 if (ins.w_lgkm is not None or ins.w_vm is not None) else 0)
        p = pos + extra
        need = 0
        rd = set(ins.rd); wr = set(ins.wr)
        isv = ins.kind in ('valu', 'trans')
        for (o, op) in hist:
            dist = p - op - 1
            ow = set(o.wr)
            req = 0
            ov = o.kind in ('valu', 'trans')
            if ov and ins.kind == 'mfma' and ow & rd: req = max(req, 2)
            if o.kind == 'mfma':
                if ins.kind == 'mfma':
                    if ow & (set(ins.A) | set(ins.B)): req = max(req, 8)
                    if ow & set(ins.C) and list(o.wr) != list(ins.C): req = max(req, 6)
                elif ins.kind in ('valu', 'trans', 'ldsr', 'ldsw', 'vload', 'vstore', 'dma'):
                    if ow & (rd | wr): req = max(req, 8)
                    if isv and set(o.C) & wr: req = max(req, 3)
            if o.kind == 'trans' and ins.kind == 'valu' and ow & rd: req = max(req, 1)
            if ov and isv and ins.mn.startswith('v_permlane') and ow & rd: req = max(req, 2)
            if ov and isv and ins.dpp and ow & rd: req = max(req, 2)
            if ov and ins.mn.startswith('v_readfirstlane') and ow & rd: req = max(req, 1)
            if ov:
                sw = {r for r in ow if r[0] == 's' or r == 'vcc'}
                if sw & rd:
                    if isv: req = max(req, 2)
                    if ins.kind in ('vload', 'vstore', 'dma'): req = max(req, 5)
                    if ins.kind in ('salu', 'branch'): req = max(req, 1)
            if o.kind == 'salu' and 'm0' in ow and ins.kind == 'dma': req = max(req, 1)
            if o.kind == 'vstore' and 'x4' in o.mn and wr & set(o.rd): req = max(req, 2)
            if o.kind == 'ldsw' and 'b128' in o.mn and wr & set(o.rd): req = max(req, 2)
            if req > dist: need = max(need, req - dist)
        if need > ins.nop:
            ins.nop = need
        p += ins.nop
        if ins.kind == 'nop':
            p += int(ins.text.split()[1])
        hist.append((ins, p))
        if len(hist) > 12: hist.pop(0)
        pos = p + 1

def emit_ins(ins):
    out = list(ins.pre)
    if ins.kind == 'label':
        return out + [ins.text]
    if ins.nop:
        out.append(f"    s_nop {ins.nop - 1}")
    w = []
    if ins.w_vm is not None: w.append(f"vmcnt({ins.w_vm})")
    if ins.w_lgkm is not None: w.append(f"lgkmcnt({ins.w_lgkm})")
    if w: out.append("    s_waitcnt " + " ".join(w))
    out.append("    " + ins.text)
    return out

def emit(prog):
    out = []
    for b in prog.blocks:
        out.append(f"; ---- {prog.name}: {b.name} x{b.loop}")
        if b.label:
            out.append(".p2align 3")
            out.append(b.label + ":")
        for ins in b.ins:
            out.extend(emit_ins(ins))
    return out
```

```python
from common import *

R = 24
RING = R * 4096
AUX = RING
LDS_BYTES = 163840
SRD = 4; SWS = 8
pOFF, pINC, pINCW, pC1, pN1, pINCS, pCS, pT = 12, 13, 14, 15, 16, 17, 18, 19
pDX, pT2, pWR, pEND, pSTART = 20, 22, 24, 25, 26
cPOS, cPOS2, cTMP, CNT, sW, sC, sR2, sRB, sROLE = 27, 28, 29, 30, 31, 32, 33, 34, 35
sIDX, sSTA, sSTB, sTMP, sMSK = 36, 37, 38, 39, 40
PK, PV, PWQ, PWO, PW1, PW2, PWS = 44, 46, 48, 50, 52, 54, 56
sH0, sH3, sHB, sPS, sPY, hT0, hT1 = 58, 59, 60, 61, 62, 64, 65
sC32, sC1K, sC2K, sXA, sXB, sSCALE, cTMP2 = 66, 67, 68, 69, 70, 71, 72
sSL = 76
vLANE, vDMA, vHT, vA0, vA1, vA2, vLPN, vLPI, vLPK, vL16, vXW, vXR = 0, 1, 2, 3, 4, 5, 6, 7, 8, 9, 10, 11

def rg(p, i, n=4):
    return f"{p}[{i}:{i+n-1}]"
def R4(r):
    return rg(r[0], r[1], 4)
def R2(r, h):
    return rg(r[0], r[1] + 2*h, 2)
def mfma(d, a, b, c, tag=0):
    cc = '0' if c is None else R4(c)
    return I(f"v_mfma_f32_16x16x32_bf16 {R4(d)}, {R4(a)}, {R4(b)}, {cc}", tag=tag)

class Ctx:
    def __init__(self, name, special, dx):
        self.p = Program(name)
        self.special = special; self.dx = dx
        self.segs = []
        self.nlab = 0
    def lab(self, s):
        self.nlab += 1
        return f"{self.p.name}_{s}{self.nlab}"
    def dma_groups(self):
        g1 = [I(f"s_mov_b32 m0, s{pWR}", hook=True), I(f"s_sub_u32 s{pC1}, s{pC1}, 1"),
              I(f"buffer_load_dwordx4 v{vDMA}, s[{SRD}:{SRD+3}], s{pOFF} offen lds")]
        g1[2].meta['hookins'] = g1[0]
        u1 = Is(f"s_add_u32 s{pWR}, s{pWR}, 4096\ns_cmp_eq_u32 s{pWR}, s{pEND}\ns_cselect_b32 s{pWR}, s{pSTART}, s{pWR}")
        us = []
        if self.special:
            us.append(Is(f"s_cmp_eq_u32 s{pC1}, s{pCS}\ns_cselect_b32 s{pT}, s{pINCS}, s{pINC}"))
            src = pT
        else:
            src = pINC
        u2 = f"s_cmp_eq_u32 s{pC1}, 0\ns_cselect_b32 s{pT}, s{pINCW}, s{src}\ns_cselect_b32 s{pC1}, s{pN1}, s{pC1}"
        if self.dx: u2 += f"\ns_cselect_b64 s[{pT2}:{pT2+1}], s[{pDX}:{pDX+1}], 0"
        u3 = f"s_add_u32 s{pOFF}, s{pOFF}, s{pT}"
        if self.dx: u3 += f"\ns_xor_b64 s[{SRD}:{SRD+1}], s[{SRD}:{SRD+1}], s[{pT2}:{pT2+1}]"
        return [g1, u1] + us + [Is(u2), Is(u3)]
    def dma_flat(self):
        return sum(self.dma_groups(), [])
    def place_dma(self, body, n, lo=0, hi=None):
        if hi is None: hi = body.n - 1
        span = hi - lo + 1
        g = lo
        for k in range(n):
            a = max(g, lo + (k * span) // n)
            b = max(a, lo + ((k + 1) * span) // n - 1)
            gs = self.dma_groups()
            g = body.fit(a, max(a, b - 2), gs[0])
            for u in gs[1:]:
                g = body.fit(g, max(g, b), u)
    def seg(self, n, ptr, size, stride, perm, off_code, inc, n1, incw, incs=None, cs=None, dxptr=None, baseadd=0):
        t = []
        if ptr is None:
            t.append(f"s_mov_b32 s{SRD+2}, 0")
            t.append(f"s_mov_b32 s{pOFF}, 0\ns_mov_b32 s{pINC}, 0\ns_mov_b32 s{pINCW}, 0\ns_mov_b32 s{pC1}, 1000\ns_mov_b32 s{pN1}, 1000")
            if self.special: t.append(f"s_mov_b32 s{pCS}, -1")
            if self.dx: t.append(f"s_mov_b64 s[{pDX}:{pDX+1}], 0")
            self.segs.append((n, "\n".join(t)))
            return
        if baseadd:
            t.append(f"s_add_u32 s{SRD}, s{ptr}, {baseadd}\ns_addc_u32 s{SRD+1}, s{ptr+1}, 0")
        else:
            t.append(f"s_mov_b64 s[{SRD}:{SRD+1}], s[{ptr}:{ptr+1}]")
        t.append(f"s_mov_b32 s{SRD+2}, {size}")
        t.append(off_code)
        for reg, val in ((pINC, inc), (pINCW, incw)):
            t.append(f"s_mov_b32 s{reg}, {val & 0xffffffff}" if isinstance(val, int) else val)
        t.append(f"s_mov_b32 s{pC1}, {n1}\ns_mov_b32 s{pN1}, {n1}")
        if self.special:
            if cs is None: t.append(f"s_mov_b32 s{pCS}, -1")
            else:
                t.append(f"s_mov_b32 s{pCS}, {cs}")
                t.append(incs)
        if self.dx:
            if dxptr is None: t.append(f"s_mov_b64 s[{pDX}:{pDX+1}], 0")
            else: t.append(f"s_xor_b64 s[{pDX}:{pDX+1}], s[{SRD}:{SRD+1}], s[{dxptr}:{dxptr+1}]")
        if perm:
            t.append(f"v_lshrrev_b32 v{vHT}, 4, v{vLANE}\nv_lshlrev_b32 v{vHT}, 3, v{vHT}\nv_bfe_u32 v{vDMA}, v{vLANE}, 2, 2\nv_add_u32 v{vHT}, v{vHT}, v{vDMA}")
        else:
            t.append(f"v_lshrrev_b32 v{vHT}, 2, v{vLANE}")
        t.append(f"v_mul_u32_u24 v{vHT}, {stride}, v{vHT}")
        t.append(f"v_lshrrev_b32 v{vDMA}, 4, v{vLANE}\nv_sub_u32 v{vDMA}, 0, v{vDMA}\nv_xor_b32 v{vDMA}, v{vDMA}, v{vLANE}\nv_and_b32 v{vDMA}, 3, v{vDMA}\nv_lshl_add_u32 v{vDMA}, v{vDMA}, 4, v{vHT}")
        self.segs.append((n, "\n".join(t)))
    def finish(self):
        p = self.p
        analyze(p, R)
        total = sum(n for n, _ in self.segs[:-1])
        assert p.maxq + 1 == total, (p.name, p.maxq + 1, total)
        starts = {}
        q = 0
        for n, txt in self.segs:
            starts[q] = txt; q += n
        for (qi, ins, it, b) in p.dma_sites:
            if qi in starts:
                h = ins.meta['hookins']
                txt = ["    " + l.strip() for l in starts[qi].split("\n") if l.strip()]
                if b.loop_is:
                    l = self.lab("SW")
                    h.pre += [f"    s_cmp_eq_u32 s{CNT}, {b.loop - it}", f"    s_cbranch_scc1 {l}", f"{l}r:"]
                    p.ool += [f"{l}:"] + txt + [f"    s_branch {l}r"]
                else:
                    h.pre += txt
        hazards(p)
        return emit(p) + p.ool

    def stage_adv(self, pos=cPOS, step=8192):
        if step == 8192:
            ins = Is(f"s_add_u32 s{pos}, s{pos}, {step}\ns_cmp_eq_u32 s{pos}, {RING}\ns_cselect_b32 s{pos}, 0, s{pos}")
        else:
            ins = Is(f"s_add_u32 s{pos}, s{pos}, {step}\ns_cmp_ge_u32 s{pos}, {RING}\ns_cselect_b32 s{cTMP2}, {RING}, 0\ns_sub_u32 s{pos}, s{pos}, s{cTMP2}")
        for i in ins: i.meta['noprol'] = True
        return ins
    def loop_end(self, label):
        return Is(f"s_sub_u32 s{CNT}, s{CNT}, 1\ns_cmp_lg_u32 s{CNT}, 0\ns_cbranch_scc1 {label}")
    def add_loop(self, body, count, name, prol=True, epil=True, pre=None):
        lin = body.linear()
        label = self.lab(name)
        if prol:
            pr = []
            for i in lin:
                if i.tag == 1 and not i.meta.get('noprol'):
                    c = i.clone(); c.meta.pop('adv', None); c.meta.pop('junk_last', None); pr.append(c)
            self.p.straight((pre or []) + pr + [I(f"s_mov_b32 s{CNT}, {count}")], name=name + " prologue")
        ep = [i.clone() for i in lin if i.tag == -1] if epil else []
        for e in ep:
            if e.meta.get('active') is not None:
                f = e.meta['active']; e.meta['active'] = (lambda it, f=f: f(count))
        self.p.loop(lin + self.loop_end(label), count, label, name=name)
        return ep

def place_frags(body, frags, NS, stage):
    F = len(frags); n = body.n
    chain = []
    g = 0
    for k in range(NS, F + NS):
        fr = frags[k % F]; prev = frags[k - NS]
        e = prev['u'] + prev['n'] - 1
        tag = 1 if k >= F else 0
        for grp in fr.get('pre', []):
            cost = sum(i.cost for i in grp)
            gg = max(g, e - 2) if grp[0].meta.get('noprol') else max(g, e - 1)
            chain.append((gg, grp, tag)); g = gg
        for j, r in enumerate(fr['reads']):
            gg = max(g + (1 if (chain and any(i.kind == 'ldsr' for i in chain[-1][1]) ) else 0), e)
            if tag:
                r.meta['junk_last'] = True
            chain.append((gg, [r], tag)); g = gg
    for (gg, grp, tag) in chain:
        if gg >= n:
            for i in grp:
                i.tag = tag; i.meta.pop('junk_last', None)
            body.put(gg, grp)
    for (gg, grp, tag) in chain:
        if gg < n:
            for i in grp: i.tag = tag
            body.put(gg, grp)

def bar(**kw):
    return I("s_barrier", **kw)

def prologue(ctx, role_code):
    t = f"""
v_and_b32 v{vLANE}, 63, v0
v_lshlrev_b32 v{vL16}, 4, v{vLANE}
v_lshrrev_b32 v{vHT}, 4, v{vLANE}
v_sub_u32 v{vHT}, 0, v{vHT}
v_and_b32 v{vHT}, 3, v{vHT}
v_lshrrev_b32 v{vA0}, 2, v{vLANE}
v_lshlrev_b32 v{vA0}, 6, v{vA0}
v_bfe_u32 v{vA1}, v{vLANE}, 1, 1
v_xor_b32 v{vA1}, v{vA1}, v{vHT}
v_lshl_add_u32 v{vLPN}, v{vA1}, 4, v{vA0}
v_and_b32 v{vA1}, 1, v{vLANE}
v_lshl_add_u32 v{vLPN}, v{vA1}, 3, v{vLPN}
v_and_b32 v{vA1}, 3, v{vLANE}
v_xor_b32 v{vA1}, v{vA1}, v{vHT}
v_lshl_add_u32 v{vLPI}, v{vA1}, 4, v{vA0}
v_bfe_u32 v{vA0}, v{vLANE}, 2, 2
v_sub_u32 v{vA0}, 0, v{vA0}
v_lshrrev_b32 v{vA1}, 4, v{vLANE}
v_xor_b32 v{vA0}, v{vA0}, v{vA1}
v_and_b32 v{vA0}, 3, v{vA0}
v_and_b32 v{vA1}, 15, v{vLANE}
v_lshlrev_b32 v{vA1}, 6, v{vA1}
v_lshl_add_u32 v{vLPK}, v{vA0}, 4, v{vA1}
s_lshl_b32 s{pSTART}, s{sW}, 10
s_mov_b32 s{pWR}, s{pSTART}
s_add_u32 s{pEND}, s{pSTART}, {RING}
s_mov_b32 s{cPOS}, 0
s_lshl_b32 s{sC32}, s{sC}, 5
s_lshl_b32 s{sC1K}, s{sC}, 10
s_lshl_b32 s{sC2K}, s{sC}, 11
s_lshl_b32 s{sXA}, s{sR2}, 12
s_add_u32 s{sXB}, s{sXA}, 2048
s_add_u32 s{sXA}, s{sXA}, s{sC2K}
s_sub_u32 s{sXB}, s{sXB}, s{sC2K}
s_lshl_b32 s{sTMP}, s{sW}, 12
s_add_u32 s{sTMP}, s{sTMP}, {AUX}
v_add_u32 v{vXW}, s{sTMP}, v{vL16}
v_xor_b32 v{vXR}, 4096, v{vXW}
""" + role_code
    ctx.p.straight(Is(t), name="prologue")

def xn_reg(m, rt, j):
    f = rt * 18 + j
    return ('a', 4*f) if f < 64 else ('v', m['xnv'] + 4*(f - 64))

def phase_X(ctx, m, L):
    ctx.seg(36, PWS, SZ['x'], 1152, False,
            f"s_lshl_b32 s{hT0}, s{sRB}, 7\ns_lshl_b32 s{hT1}, s{sW}, 4\ns_add_u32 s{hT0}, s{hT0}, s{hT1}\ns_mul_i32 s{pOFF}, s{hT0}, 1152",
            64*1152, 2, 64 - 64*1152)
    ins = []
    for k in range(L): ins += ctx.dma_flat()
    for j in range(18):
        if j:
            ins += ctx.stage_adv()
        ins += Is(f"s_add_u32 s{cTMP}, s{cPOS}, s{sXA}")
        a0 = I(f"v_xor_b32 v{vA0}, s{cTMP}, v{vLPK}")
        if j: a0.meta['adv'] = [('c', 2)]
        else: a0.meta['setptr'] = [('c', 0)]
        ins.append(a0)
        ins += Is(f"s_add_u32 s{cTMP}, s{cPOS}, s{sXB}\nv_xor_b32 v{vA1}, s{cTMP}, v{vLPK}")
        ins.append(bar())
        for rt in range(4):
            a = vA0 if rt < 2 else vA1
            ins.append(I(f"ds_read_b128 {R4(xn_reg(m, rt, j))}, v{a} offset:{(rt & 1)*1024}", rq=('c', rt & 1)))
        ins += ctx.dma_flat() + ctx.dma_flat()
    adv = ctx.stage_adv()
    adv[0].meta['adv'] = [('c', 2)]
    ins += adv
    ctx.p.straight(ins, name="X")

def phase_F1(ctx, m, nk, nstash, bar_every=2):
    ctx.seg(18*nk, PW1, SZ['w1'], 9216, True,
            f"s_lshr_b32 s{hT0}, s{sW}, 1\ns_lshl_b32 s{hT0}, s{hT0}, 5\ns_lshl_b32 s{hT1}, s{sC}, 2\ns_add_u32 s{hT0}, s{hT0}, s{hT1}\ns_mul_i32 s{pOFF}, s{hT0}, 9216\ns_lshl_b32 s{hT0}, s{sHB}, 1\ns_add_u32 s{pOFF}, s{pOFF}, s{hT0}",
            64*9216, 9, 64 - 8*64*9216)
    NS = m['NS']; stg = m['stg']; acc = m['acc1']; H = m['H']; tmp = m['tmp']
    bb = []; frags = []
    for s in range(2):
        for j in range(18):
            f = s*18 + j
            st = (stg[0], stg[1] + 4*(f % NS))
            u = len(bb)
            for rt in range(4):
                d = ('v', acc + 16*s + 4*rt)
                bb.append(mfma(d, st, xn_reg(m, rt, j), None if j == 0 else d))
            kk = f % 4
            reads = [I(f"ds_read_b64_tr_b16 {R2(st, h)}, v{vA0} offset:{kk*2048 + h*1024}", rq=('c', kk >> 1)) for h in range(2)]
            pre = []
            if kk == 0:
                pre.append(ctx.stage_adv())
                g = Is(f"s_or_b32 s{cTMP}, s{cPOS}, s{sC32}\nv_xor_b32 v{vA0}, s{cTMP}, v{vLPN}")
                g[1].meta['adv'] = [('c', 2)]
                pre.append(g)
                if (f // 4) % bar_every == 0: pre.append([bar()])
            frags.append(dict(u=u, n=4, reads=reads, pre=pre))
    body = Body(bb)
    place_frags(body, frags, NS, None)
    ctx.place_dma(body, 18)
    Hall = [f"v{H+i}" for i in range(m['nH']*16)]
    for s in range(2):
        g = 72*(s+1) + 3
        for rt in range(4):
            a = acc + 16*s + 4*rt
            t = tmp + 2*(rt & 1)
            cv = Is(f"v_cvt_pk_bf16_f32 v{t}, v{a}, v{a+1}\nv_cvt_pk_bf16_f32 v{t+1}, v{a+2}, v{a+3}")
            g = body.fit(g, g + 8, cv)
            dst = H + 4*rt + 2*s
            mx = [I(f"s_set_gpr_idx_on s{sIDX}, gpr_idx(DST)"), I(f"v_pk_max_i16 v{dst}, v{t}, 0", wr=Hall), I(f"v_pk_max_i16 v{dst+1}, v{t+1}, 0", wr=Hall), I("s_set_gpr_idx_off")]
            g = body.fit(g + 1, g + 8, mx)
        if s == 1:
            last = H + (m['nH'] - 1)*16
            if nstash:
                for rt in range(4):
                    wr = [I(f"s_mov_b64 exec, s[{sMSK}:{sMSK+1}]"), I(f"ds_write_b128 v{vA2}, v[{last+4*rt}:{last+4*rt+3}] offset:{rt*1024}", active=(lambda it: 1 <= it <= nstash)), I("s_mov_b64 exec, -1")]
                    g = body.fit(g + 4, g + 10, wr)
                g = body.fit(g + 1, g + 6, Is(f"v_add_u32 v{vA2}, 4096, v{vA2}"))
            upd = Is(f"s_sub_u32 s{sTMP}, {nk - nstash}, s{CNT}\ns_lshl_b32 s{sTMP}, s{sTMP}, 4\ns_cmp_gt_u32 s{CNT}, {nk - nstash}\ns_cselect_b32 s{sIDX}, {(m['nH']-1)*16}, s{sTMP}")
            g = body.fit(g, g + 4, upd)
            if nstash:
                g = body.fit(g, g + 4, Is(f"s_cmp_gt_u32 s{CNT}, {nk - nstash}\ns_cselect_b64 s[{sMSK}:{sMSK+1}], -1, 0"))
            assert g < 72*2 + 72, g
            for i in upd: i.meta['noepil'] = True
    pre = Is(f"s_mov_b32 s{sIDX}, {(m['nH']-1)*16}\ns_mov_b64 s[{sMSK}:{sMSK+1}], 0\ns_lshl_b32 s{sTMP}, s{sW}, 14\ns_add_u32 s{sTMP}, s{sTMP}, {AUX - 4096}\nv_add_u32 v{vA2}, s{sTMP}, v{vL16}")
    ep = ctx.add_loop(body, nk, "F1", pre=pre)
    ep = [e for e in ep if e.kind in ('valu',) and not e.text.startswith('v_add_u32') or e.mn.startswith('s_set_gpr')]
    ctx.p.straight(ep, name="F1 epilogue")
    print(ctx.p.name, "F1 overload", body.over())

def phase_G2(ctx, m, ksteps, segargs, spart, name, bar_every=2, pre=None):
    nq = len(ksteps)
    ctx.seg(18*nq, *segargs)
    NS = m['NS2']; stg = m['stg2']; accs = m['acc2']; rcv = m['rcv']; pk = m['pk']
    bb = []; frags = []
    pend = []
    f = 0
    for pp in range(2):
        first = [True, True]
        started = set()
        for qi, ks in enumerate(ksteps):
            gq = pp*nq + qi
            firstfrag = True
            for (Bf, nrt, off, setbase) in ks:
                for t in range(2):
                    st = (stg[0], stg[1] + 4*(f % NS))
                    u = len(bb)
                    for rt in range(nrt):
                        d = ('v', accs[pp] + 16*t + 4*rt)
                        bb.append(mfma(d, st, Bf(rt), d if (t, rt) in started else None))
                        started.add((t, rt))
                    a = vA0 if t == 0 else vA1
                    reads = [I(f"ds_read_b64_tr_b16 {R2(st, h)}, v{a} offset:{(gq & 1)*4096 + off + h*2048}", rq=('c', gq & 1)) for h in range(2)]
                    pr = []
                    if firstfrag and gq % 2 == 0:
                        pr.append(ctx.stage_adv())
                        if setbase: g = Is(f"s_add_u32 s{cTMP}, s{cPOS}, s{sC1K}\nv_xor_b32 v{vA0}, s{cTMP}, v{vLPN}\nv_xor_b32 v{vA1}, 32, v{vA0}")
                        else: g = Is(f"s_mov_b32 s{cTMP}, s{cPOS}\nv_xor_b32 v{vA0}, s{cTMP}, v{vLPN}\nv_xor_b32 v{vA1}, 32, v{vA0}")
                        g[1].meta['adv'] = [('c', 2)]
                        pr.append(g)
                        if (gq // 2) % bar_every == 0: pr.append([bar()])
                    firstfrag = False
                    frags.append(dict(u=u, n=nrt, reads=reads, pre=pr))
                    f += 1
        pend.append(len(bb))
    assert len(frags) % NS == 0, (len(frags), NS)
    body = Body(bb)
    place_frags(body, frags, NS, None)
    ctx.place_dma(body, 2*nq)
    n = body.n
    bars = [g for g in range(n) if any(i.kind == 'bar' for i in body.gaps[g])]
    bars = bars + [b + n for b in bars] + [b + 2*n for b in bars]
    for pp in range(2):
        e = pend[pp]
        span = (pend[1] - pend[0] if pp == 0 else pend[0])
        lim = e + span
        sp = 4 if span >= 80 else 2
        g = e + 2 - sp
        for k, (t, rt) in enumerate([(0, 2), (0, 3), (1, 2), (1, 3)]):
            a = accs[pp] + 16*t + 4*rt
            w = I(f"ds_write_b128 v{vXW}, v[{a}:{a+3}] offset:{pp*16384 + k*1024}", pub=True)
            base = e + 2 + sp*k
            g = body.fit(max(base, g + 1), max(base + sp - 1, g + 1), w)
        nb = min(b for b in bars if b >= g + 4)
        if nb > e + (span * 45) // 100:
            nb = body.put(g + 4, [bar(drain_w=True, ring=False)])
        else:
            for i in body.gaps[nb % n]:
                if i.kind == 'bar': i.meta['drain_w'] = True
        g = nb
        gr = []
        for k in (0, 2, 1, 3):
            r = I(f"ds_read_b128 v[{rcv+4*k}:{rcv+4*k+3}], v{vXR} offset:{pp*16384 + k*1024}")
            g = body.fit(g + 1, g + sp//2, r)
            gr.append(g)
        st = sSTA if pp == 0 else sSTB
        ops = []
        for rt in range(2):
            for t in range(2):
                k = t*2 + rt
                a = accs[pp] + 16*t + 4*rt
                for h in range(4):
                    ops.append(I(f"v_add_f32 v{a+h}, v{a+h}, v{rcv+4*k+h}"))
                for h in range(2):
                    ops.append(I(f"v_cvt_pk_bf16_f32 v{pk+4*rt+2*t+h}, v{a+2*h}, v{a+2*h+1}"))
            ops.append(I(f"buffer_store_dwordx4 v[{pk+4*rt}:{pk+4*rt+3}], v{vL16}, s[{SWS}:{SWS+3}], s{st} offen offset:{rt*1024} sc1"))
        g0 = gr[0] + 7
        avail = lim - 2 - g0
        g = g0
        for k, op in enumerate(ops):
            hi = g0 + ((k + 1) * avail) // len(ops)
            g = body.fit(g, max(g, hi), op)
        assert g < lim, (name, pp, g, lim)
        if pp == 0:
            u = Is(f"s_add_u32 s{sSTB}, s{sSTA}, 8192\ns_add_u32 s{sSTA}, s{sSTA}, 16384")
            body.fit(g, g, u)
    pre = (pre or []) + Is(f"s_mul_i32 s{sSTA}, s{sRB}, {NP*PSZ}\ns_mul_i32 s{sTMP}, s{spart}, {PSZ}\ns_add_u32 s{sSTA}, s{sSTA}, s{sTMP}\ns_lshl_b32 s{sTMP}, s{sW}, 11\ns_add_u32 s{sSTA}, s{sSTA}, s{sTMP}\ns_add_u32 s{sSTA}, s{sSTA}, {PART_OFF}\ns_mov_b32 s{sSTB}, 0xf0000000")
    ep = ctx.add_loop(body, 9, name, pre=pre)
    out = []
    done = False
    for e in ep:
        if e.kind == 'bar': continue
        if e.kind == 'ldsr' and not done:
            out.append(bar(drain_w=True, ring=False)); done = True
        out.append(e)
    ctx.p.straight(out, name=name + " epilogue")
    print(ctx.p.name, name, "overload", body.over(), "n", n)
```

```python
from common import *

def ln_kernel():
    K = "ln_kernel"
    t = []
    a = t.append
    a(f"""
s_cmp_ge_u32 s2, 256
s_cbranch_scc1 LN_end
s_load_dwordx2 s[4:5], s[0:1], {KA['x']}
s_load_dwordx2 s[8:9], s[0:1], {KA['ws']}
v_lshrrev_b32 v1, 4, v0
v_and_b32 v2, 15, v0
s_lshl_b32 s3, s2, 3
v_add_u32 v1, s3, v1
v_mul_u32_u24 v1, 1152, v1
v_lshl_add_u32 v1, v2, 4, v1
s_mov_b32 s6, {SZ['x']}
s_mov_b32 s7, 0x00020000
s_mov_b32 s10, {SZ['x']}
s_mov_b32 s11, 0x00020000
s_mov_b32 s12, 0x00ff00ff
s_mov_b32 s13, 0x00ff00ff
s_mov_b32 s14, 0xffff0000
s_waitcnt lgkmcnt(0)
""")
    for k in range(4):
        a(f"buffer_load_dwordx4 v[{4+4*k}:{7+4*k}], v1, s[4:7], 0 offen offset:{256*k}")
    for i in range(4):
        a(f"v_mov_b32 v{20+i}, 0")
    a("s_mov_b64 exec, s[12:13]")
    a(f"buffer_load_dwordx4 v[20:23], v1, s[4:7], 0 offen offset:1024")
    a("s_mov_b64 exec, -1")
    for i in range(20):
        a(f"v_lshlrev_b32 v{24+2*i}, 16, v{4+i}")
        a(f"v_and_b32 v{25+2*i}, s14, v{4+i}")
    a("v_add_f32 v64, v24, v25")
    a("v_add_f32 v65, v26, v27")
    for i in range(2, 20):
        r = 64 + (i & 1)
        a(f"v_add_f32 v{r}, v{r}, v{24+2*i}")
        a(f"v_add_f32 v{r}, v{r}, v{25+2*i}")
    a("v_add_f32 v64, v64, v65")
    for s in (8, 4, 2, 1):
        a(f"v_add_f32_dpp v64, v64, v64 row_ror:{s} row_mask:0xf bank_mask:0xf")
    a(f"v_mul_f32 v64, {1.0/576.0!r}, v64")
    a("v_mov_b32 v66, 0")
    a("v_mov_b32 v67, 0")
    for i in range(40):
        if i == 32: a("s_mov_b64 exec, s[12:13]")
        r = 66 + (i & 1); tt = 68 + (i & 1)
        a(f"v_sub_f32 v{tt}, v{24+i}, v64")
        a(f"v_fma_f32 v{r}, v{tt}, v{tt}, v{r}")
    a("s_mov_b64 exec, -1")
    a("v_add_f32 v66, v66, v67")
    for s in (8, 4, 2, 1):
        a(f"v_add_f32_dpp v66, v66, v66 row_ror:{s} row_mask:0xf bank_mask:0xf")
    a(f"""
v_mul_f32 v66, {1.0/576.0!r}, v66
v_cvt_pk_bf16_f32 v66, v66, v64
v_and_b32 v64, s14, v66
v_lshlrev_b32 v66, 16, v66
v_add_f32 v66, 0x3727c5ac, v66
v_cvt_pk_bf16_f32 v66, v66, v66
v_lshlrev_b32 v66, 16, v66
v_sqrt_f32 v66, v66
v_cvt_pk_bf16_f32 v66, v66, v66
v_lshlrev_b32 v66, 16, v66
v_rcp_f32 v66, v66
""")
    for i in range(20):
        lo, hi = 24 + 2*i, 25 + 2*i
        a(f"v_sub_f32 v{lo}, v{lo}, v64")
        a(f"v_sub_f32 v{hi}, v{hi}, v64")
        a(f"v_cvt_pk_bf16_f32 v{4+i}, v{lo}, v{hi}")
        a(f"v_lshlrev_b32 v{lo}, 16, v{4+i}")
        a(f"v_and_b32 v{hi}, s14, v{4+i}")
        a(f"v_mul_f32 v{lo}, v{lo}, v66")
        a(f"v_mul_f32 v{hi}, v{hi}, v66")
        a(f"v_cvt_pk_bf16_f32 v{4+i}, v{lo}, v{hi}")
        if i % 4 == 3:
            k = i // 4
            if k == 4: a("s_mov_b64 exec, s[12:13]")
            a(f"buffer_store_dwordx4 v[{4+4*k}:{7+4*k}], v1, s[8:11], 0 offen offset:{256*k}")
    a("LN_end:")
    a("s_endpgm")
    body = simple_kernel(K, "\n".join(t))
    return K, body, desc(K, 72, 24, 72), "grid=(256,1,1) block=(128,1,1) lds=0"

def red_kernel():
    K = "red_kernel"
    t = []
    a = t.append
    a(f"""
s_cmp_ge_u32 s2, 576
s_cbranch_scc1 RED_end
s_load_dwordx2 s[4:5], s[0:1], {KA['ws']}
s_load_dwordx2 s[8:9], s[0:1], {KA['x']}
s_load_dwordx2 s[12:13], s[0:1], {KA['out']}
v_lshrrev_b32 v1, 6, v0
v_and_b32 v2, 63, v0
v_readfirstlane_b32 s16, v1
s_mov_b32 s6, {WS_USED}
s_mov_b32 s7, 0x00020000
s_mov_b32 s10, {SZ['x']}
s_mov_b32 s11, 0x00020000
s_mov_b32 s14, {SZ['out']}
s_mov_b32 s15, 0x00020000
s_mul_hi_u32 s17, s2, {(1<<32)//36 + 1}
s_mul_i32 s18, s17, 36
s_sub_u32 s18, s2, s18
s_lshl_b32 s18, s18, 2
s_add_u32 s18, s18, s16
s_mul_i32 s19, s17, {NP*PSZ}
s_lshl_b32 s20, s18, 10
s_add_u32 s19, s19, s20
s_add_u32 s19, s19, {PART_OFF}
v_lshlrev_b32 v3, 4, v2
s_lshr_b32 s21, s18, 3
s_and_b32 s22, s18, 7
s_lshl_b32 s22, s22, 4
s_lshl_b32 s23, s17, 7
s_add_u32 s22, s22, s23
s_mul_i32 s22, s22, 1152
s_lshl_b32 s21, s21, 6
s_add_u32 s22, s22, s21
v_and_b32 v4, 15, v2
v_mul_u32_u24 v4, 1152, v4
v_lshrrev_b32 v5, 4, v2
v_lshl_add_u32 v4, v5, 3, v4
s_mov_b32 s24, 0xffff0000
s_waitcnt lgkmcnt(0)
""")
    for p in range(NP):
        a(f"buffer_load_dwordx4 v[{8+4*p}:{11+4*p}], v3, s[4:7], s19 offen")
        if p < NP - 1: a(f"s_add_u32 s19, s19, {PSZ}")
    X = 8 + 4*NP
    a(f"buffer_load_dwordx2 v[{X}:{X+1}], v4, s[8:11], s22 offen")
    a(f"buffer_load_dwordx2 v[{X+2}:{X+3}], v4, s[8:11], s22 offen offset:32")
    SA = X + 4; YA = SA + 8; T = YA + 8
    for p in range(NP):
        acc = SA if p < NP_S else YA
        first = p == 0 or p == NP_S
        for i in range(4):
            src = 8 + 4*p + i
            if first:
                a(f"v_lshlrev_b32 v{acc+2*i}, 16, v{src}")
                a(f"v_and_b32 v{acc+2*i+1}, s24, v{src}")
            else:
                a(f"v_lshlrev_b32 v{T}, 16, v{src}")
                a(f"v_and_b32 v{T+1}, s24, v{src}")
                a(f"v_add_f32 v{acc+2*i}, v{acc+2*i}, v{T}")
                a(f"v_add_f32 v{acc+2*i+1}, v{acc+2*i+1}, v{T+1}")
    def rnd(r):
        a(f"v_cvt_pk_bf16_f32 v{T}, v{r}, v{r+1}")
        a(f"v_lshlrev_b32 v{r}, 16, v{T}")
        a(f"v_and_b32 v{r+1}, s24, v{T}")
    for i in range(4):
        s, y = SA + 2*i, YA + 2*i
        rnd(s); rnd(y)
        for e in range(2):
            a(f"v_mul_f32 v{T+2+e}, 0xbfb8aa3b, v{y+e}")
            a(f"v_exp_f32 v{T+2+e}, v{T+2+e}")
        for e in range(2):
            a(f"v_add_f32 v{T+2+e}, 1.0, v{T+2+e}")
            a(f"v_rcp_f32 v{T+2+e}, v{T+2+e}")
        for e in range(2):
            a(f"v_mul_f32 v{y+e}, v{y+e}, v{T+2+e}")
        rnd(y)
        for e in range(2):
            a(f"v_mul_f32 v{s+e}, v{s+e}, v{y+e}")
        rnd(s)
        a(f"v_lshlrev_b32 v{T+2}, 16, v{X+i}")
        a(f"v_and_b32 v{T+3}, s24, v{X+i}")
        a(f"v_add_f32 v{s}, v{s}, v{T+2}")
        a(f"v_add_f32 v{s+1}, v{s+1}, v{T+3}")
        a(f"v_cvt_pk_bf16_f32 v{X+i}, v{s}, v{s+1}")
    a(f"buffer_store_dwordx2 v[{X}:{X+1}], v4, s[12:15], s22 offen")
    a(f"buffer_store_dwordx2 v[{X+2}:{X+3}], v4, s[12:15], s22 offen offset:32")
    a("RED_end:")
    a("s_endpgm")
    body = simple_kernel(K, "\n".join(t))
    nv = T + 4
    nv = (nv + 3) // 4 * 4
    return K, body, desc(K, nv, 32, nv), "grid=(576,1,1) block=(256,1,1) lds=0"
```

```python
import sys
from mainlib import *
from small import *
import attn

NKF = 13; NKM = 5

def prog_TF(L):
    ctx = Ctx("TF", special=False, dx=False)
    m = dict(xnv=12, H=44, nH=9, acc1=188, stg=('v', 220), NS=4, tmp=244,
             NS2=4, stg2=('a', 64), acc2=[188, 12], rcv=220, pk=236)
    prologue(ctx, f"s_sub_u32 s{sHB}, s{sROLE}, 12\ns_mul_i32 s{sHB}, s{sHB}, {NKF*64}\ns_add_u32 s{sPY}, s{sROLE}, {NP_S - 8}")
    phase_X(ctx, m, L)
    nst = NKF - m['nH']
    phase_F1(ctx, m, NKF, nst)
    def Hf(k):
        if k < nst: return lambda rt: ('a', 16*k + 4*rt)
        return lambda rt: ('v', m['H'] + 16*(k - nst) + 4*rt)
    ks = [[(Hf(k), 4, 0, True)] for k in range(NKF)]
    pre = Is(f"s_lshl_b32 s{sTMP}, s{sW}, 14\ns_add_u32 s{sTMP}, s{sTMP}, {AUX}\nv_add_u32 v{vA2}, s{sTMP}, v{vL16}")
    for k in range(nst*4):
        pre.append(I(f"ds_read_b128 a[{4*k}:{4*k+3}], v{vA2} offset:{k*1024}"))
    pre.append(I("s_waitcnt lgkmcnt(0)"))
    phase_G2(ctx, m, ks, w2seg(NKF), sPY, "F2", pre=pre)
    ctx.seg(1000, None, 0, 0, 0, 0, 0, 0, 0)
    ctx.p.straight(Is("s_endpgm"), name="end")
    return ctx.finish()

def w2seg(nk):
    return (PW2, SZ['w2'], 1152, False,
            f"s_lshl_b32 s{hT0}, s{sW}, 4\ns_add_u32 s{hT0}, s{hT0}, s{sHB}\ns_mul_i32 s{pOFF}, s{hT0}, 1152",
            64*1152, nk, 64 - (nk-1)*64*1152)

def best_L(fn, hi=22):
    import io, contextlib
    for L in range(hi, 4, -1):
        try:
            with contextlib.redirect_stdout(io.StringIO()):
                fn(L)
            print(fn.__name__, "L =", L)
            return fn(L)
        except AssertionError as e:
            if 'ring WAR' not in str(e) and 'after overwrite' not in str(e): raise
    raise RuntimeError("no L")

def main_kernel(which):
    K = NAME + "_kernel"
    t = f"""
s_cmp_ge_u32 s2, 256
s_cbranch_scc1 MAIN_end
s_load_dwordx2 s[{PK}:{PK+1}], s[0:1], {KA['k']}
s_load_dwordx2 s[{PV}:{PV+1}], s[0:1], {KA['v']}
s_load_dwordx2 s[{PWQ}:{PWQ+1}], s[0:1], {KA['wq']}
s_load_dwordx2 s[{PWO}:{PWO+1}], s[0:1], {KA['wo']}
s_load_dwordx2 s[{PW1}:{PW1+1}], s[0:1], {KA['w1']}
s_load_dwordx2 s[{PW2}:{PW2+1}], s[0:1], {KA['w2']}
s_load_dwordx2 s[{PWS}:{PWS+1}], s[0:1], {KA['ws']}
v_lshrrev_b32 v1, 6, v0
v_readfirstlane_b32 s{sW}, v1
s_and_b32 s{sROLE}, s2, 15
s_lshr_b32 s{sRB}, s2, 4
s_mov_b32 s{SRD+3}, 0x00020000
s_mov_b32 s{SWS+2}, {WS_USED}
s_mov_b32 s{SWS+3}, 0x00020000
s_and_b32 s{sC}, s{sW}, 1
s_lshr_b32 s{sR2}, s{sW}, 1
s_waitcnt lgkmcnt(0)
s_mov_b64 s[{SWS}:{SWS+1}], s[{PWS}:{PWS+1}]
s_cmp_ge_u32 s{sROLE}, 12
s_cbranch_scc1 {'TF_start' if 'TF' in which else 'MAIN_end'}
s_cmp_ge_u32 s{sROLE}, 8
s_cbranch_scc1 {'TM_start' if 'TM' in which else 'MAIN_end'}
s_branch {'T3_start' if 'T3' in which else 'MAIN_end'}
MAIN_end:
s_endpgm
"""
    out = simple_kernel(K, t)
    if 'TF' in which: out += [".p2align 6", "TF_start:"] + best_L(prog_TF)
    if 'TM' in which: out += [".p2align 6", "TM_start:"] + best_L(attn.prog_TM)
    if 'T3' in which: out += [".p2align 6", "T3_start:"] + best_L(attn.prog_T3)
    return K, out, desc(K, 512, 96, 256), f"grid=(256,1,1) block=(256,1,1) lds={LDS_BYTES}"

def build(path, which=('TF', 'TM', 'T3')):
    ks = [ln_kernel(), main_kernel(which), red_kernel()]
    hdr = open("cdna_kernels/%s.s.ref" % NAME).read().split("\n")
    hdr = [l for l in hdr if l.startswith(";") and "@launch" not in l and "Override" not in l and "grid=ceil" not in l]
    out = hdr[:]
    for k, b, d, l in ks:
        out.append(f"; @launch kernel={k} {l}")
    out.append('.amdgcn_target "amdgcn-amd-amdhsa--gfx950"')
    out.append(".text")
    for k, b, d, l in ks:
        out += [f".globl {k}", ".p2align 8", f".type {k},@function", f"{k}:"] + b
    out.append('.section .rodata,"a"')
    for k, b, d, l in ks:
        out += [".p2align 6", d]
    open(path, "w").write("\n".join(out) + "\n")

if __name__ == "__main__":
    path = sys.argv[1] if len(sys.argv) > 1 else "k.s"
    which = sys.argv[2].split(",") if len(sys.argv) > 2 else ('TF', 'TM', 'T3')
    build(path, which)
```

```python
from core import *
NAME = "recurrent_scan__sliding_block_cached__dense_activation_relu__prompt"
D = 576; S = 2048; DFF = 4608
XN_OFF = 0
PART_OFF = 4 << 20
PSZ = 147456
NP_S = 12; NP_Y = 8; NP = NP_S + NP_Y
WS_USED = PART_OFF + 16 * NP * PSZ
WS_SRD = 64 << 20
KA = dict(x=0, k=8, v=16, wq=24, wo=32, bx=40, w1=48, w2=56, out=64, dbg=72, ws=80)
SZ = dict(x=S*D*2, k=16*2048*128*2, v=16*2048*128*2, wq=D*4096*2, wo=4096*D*2, w1=D*DFF*2, w2=DFF*D*2, out=S*D*2)

def desc(name, vgpr, sgpr, accum):
    return f""".amdhsa_kernel {name}
  .amdhsa_next_free_vgpr {vgpr}
  .amdhsa_next_free_sgpr {sgpr}
  .amdhsa_accum_offset {accum}
  .amdhsa_group_segment_fixed_size 0
  .amdhsa_kernarg_size 88
  .amdhsa_user_sgpr_count 2
  .amdhsa_user_sgpr_kernarg_segment_ptr 1
  .amdhsa_system_sgpr_workgroup_id_x 1
.end_amdhsa_kernel"""

def simple_kernel(name, text):
    p = Program(name)
    p.straight(Is(text), name=name)
    analyze(p, 1)
    hazards(p)
    return emit(p)

import os
STAMP = int(os.environ.get("STAMP", "0"))
DBG_OFF = 60 << 20
```

```python
from common import *

R = 24
RING = R * 4096
AUX = RING
LDS_BYTES = 163840
SRD = 4; SWS = 8
pOFF, pINC, pINCW, pC1, pN1, pINCS, pCS, pT = 12, 13, 14, 15, 16, 17, 18, 19
pDX, pT2, pWR, pEND, pSTART = 20, 22, 24, 25, 26
cPOS, cPOS2, cTMP, CNT, sW, sC, sR2, sRB, sROLE = 27, 28, 29, 30, 31, 32, 33, 34, 35
sIDX, sSTA, sSTB, sTMP, sMSK = 36, 37, 38, 39, 40
PK, PV, PWQ, PWO, PW1, PW2, PWS = 44, 46, 48, 50, 52, 54, 56
sH0, sH3, sHB, sPS, sPY, hT0, hT1 = 58, 59, 60, 61, 62, 64, 65
sC32, sC1K, sC2K, sXA, sXB, sSCALE, cTMP2 = 66, 67, 68, 69, 70, 71, 72
sSL = 76
vLANE, vDMA, vHT, vA0, vA1, vA2, vLPN, vLPI, vLPK, vL16, vXW, vXR = 0, 1, 2, 3, 4, 5, 6, 7, 8, 9, 10, 11

def rg(p, i, n=4):
    return f"{p}[{i}:{i+n-1}]"
def R4(r):
    return rg(r[0], r[1], 4)
def R2(r, h):
    return rg(r[0], r[1] + 2*h, 2)
def mfma(d, a, b, c, tag=0):
    cc = '0' if c is None else R4(c)
    return I(f"v_mfma_f32_16x16x32_bf16 {R4(d)}, {R4(a)}, {R4(b)}, {cc}", tag=tag)

class Ctx:
    def __init__(self, name, special, dx):
        self.p = Program(name)
        self.special = special; self.dx = dx
        self.segs = []
        self.nlab = 0
    def lab(self, s):
        self.nlab += 1
        return f"{self.p.name}_{s}{self.nlab}"
    def dma_groups(self):
        g1 = [I(f"s_mov_b32 m0, s{pWR}", hook=True), I(f"s_sub_u32 s{pC1}, s{pC1}, 1"),
              I(f"buffer_load_dwordx4 v{vDMA}, s[{SRD}:{SRD+3}], s{pOFF} offen lds")]
        g1[2].meta['hookins'] = g1[0]
        u1 = Is(f"s_add_u32 s{pWR}, s{pWR}, 4096\ns_cmp_eq_u32 s{pWR}, s{pEND}\ns_cselect_b32 s{pWR}, s{pSTART}, s{pWR}")
        us = []
        if self.special:
            us.append(Is(f"s_cmp_eq_u32 s{pC1}, s{pCS}\ns_cselect_b32 s{pT}, s{pINCS}, s{pINC}"))
            src = pT
        else:
            src = pINC
        u2 = f"s_cmp_eq_u32 s{pC1}, 0\ns_cselect_b32 s{pT}, s{pINCW}, s{src}\ns_cselect_b32 s{pC1}, s{pN1}, s{pC1}"
        if self.dx: u2 += f"\ns_cselect_b64 s[{pT2}:{pT2+1}], s[{pDX}:{pDX+1}], 0"
        u3 = f"s_add_u32 s{pOFF}, s{pOFF}, s{pT}"
        if self.dx: u3 += f"\ns_xor_b64 s[{SRD}:{SRD+1}], s[{SRD}:{SRD+1}], s[{pT2}:{pT2+1}]"
        return [g1, u1] + us + [Is(u2), Is(u3)]
    def dma_flat(self):
        return sum(self.dma_groups(), [])
    def place_dma(self, body, n, lo=0, hi=None):
        if hi is None: hi = body.n - 1
        span = hi - lo + 1
        g = lo
        for k in range(n):
            a = max(g, lo + (k * span) // n)
            b = max(a, lo + ((k + 1) * span) // n - 1)
            gs = self.dma_groups()
            g = body.fit(a, max(a, b - 2), gs[0])
            for u in gs[1:]:
                g = body.fit(g, max(g, b), u)
    def seg(self, n, ptr, size, stride, perm, off_code, inc, n1, incw, incs=None, cs=None, dxptr=None, baseadd=0):
        t = []
        if ptr is None:
            t.append(f"s_mov_b32 s{SRD+2}, 0")
            t.append(f"s_mov_b32 s{pOFF}, 0\ns_mov_b32 s{pINC}, 0\ns_mov_b32 s{pINCW}, 0\ns_mov_b32 s{pC1}, 1000\ns_mov_b32 s{pN1}, 1000")
            if self.special: t.append(f"s_mov_b32 s{pCS}, -1")
            if self.dx: t.append(f"s_mov_b64 s[{pDX}:{pDX+1}], 0")
            self.segs.append((n, "\n".join(t)))
            return
        if baseadd:
            t.append(f"s_add_u32 s{SRD}, s{ptr}, {baseadd}\ns_addc_u32 s{SRD+1}, s{ptr+1}, 0")
        else:
            t.append(f"s_mov_b64 s[{SRD}:{SRD+1}], s[{ptr}:{ptr+1}]")
        t.append(f"s_mov_b32 s{SRD+2}, {size}")
        t.append(off_code)
        for reg, val in ((pINC, inc), (pINCW, incw)):
            t.append(f"s_mov_b32 s{reg}, {val & 0xffffffff}" if isinstance(val, int) else val)
        t.append(f"s_mov_b32 s{pC1}, {n1}\ns_mov_b32 s{pN1}, {n1}")
        if self.special:
            if cs is None: t.append(f"s_mov_b32 s{pCS}, -1")
            else:
                t.append(f"s_mov_b32 s{pCS}, {cs}")
                t.append(incs)
        if self.dx:
            if dxptr is None: t.append(f"s_mov_b64 s[{pDX}:{pDX+1}], 0")
            else: t.append(f"s_xor_b64 s[{pDX}:{pDX+1}], s[{SRD}:{SRD+1}], s[{dxptr}:{dxptr+1}]")
        if perm:
            t.append(f"v_lshrrev_b32 v{vHT}, 4, v{vLANE}\nv_lshlrev_b32 v{vHT}, 3, v{vHT}\nv_bfe_u32 v{vDMA}, v{vLANE}, 2, 2\nv_add_u32 v{vHT}, v{vHT}, v{vDMA}")
        else:
            t.append(f"v_lshrrev_b32 v{vHT}, 2, v{vLANE}")
        t.append(f"v_mul_u32_u24 v{vHT}, {stride}, v{vHT}")
        t.append(f"v_lshrrev_b32 v{vDMA}, 4, v{vLANE}\nv_sub_u32 v{vDMA}, 0, v{vDMA}\nv_xor_b32 v{vDMA}, v{vDMA}, v{vLANE}\nv_and_b32 v{vDMA}, 3, v{vDMA}\nv_lshl_add_u32 v{vDMA}, v{vDMA}, 4, v{vHT}")
        self.segs.append((n, "\n".join(t)))
    def finish(self):
        p = self.p
        analyze(p, R)
        total = sum(n for n, _ in self.segs[:-1])
        assert p.maxq + 1 == total, (p.name, p.maxq + 1, total)
        starts = {}
        q = 0
        for n, txt in self.segs:
            starts[q] = txt; q += n
        for (qi, ins, it, b) in p.dma_sites:
            if qi in starts:
                h = ins.meta['hookins']
                txt = ["    " + l.strip() for l in starts[qi].split("\n") if l.strip()]
                if b.loop_is:
                    l = self.lab("SW")
                    h.pre += [f"    s_cmp_eq_u32 s{CNT}, {b.loop - it}", f"    s_cbranch_scc1 {l}", f"{l}r:"]
                    p.ool += [f"{l}:"] + txt + [f"    s_branch {l}r"]
                else:
                    h.pre += txt
        hazards(p)
        return emit(p) + p.ool

    def stamp(self):
        if not STAMP: return
        k = getattr(self, 'nst', 0); self.nst = k + 1
        assert k < 12
        self.p.straight(Is(f"{'s_memtime' if STAMP == 2 else 's_memrealtime'} s[82:83]\ns_waitcnt lgkmcnt(0)\ns_mov_b32 s{84+k}, s82"), name="stamp")
    def end(self):
        t = ""
        if STAMP:
            self.stamp()
            t += f"s_lshl_b32 s82, s2, 8\ns_lshl_b32 s83, s{sW}, 6\ns_add_u32 s82, s82, s83\ns_add_u32 s82, s82, {DBG_OFF + 65536}\nv_mov_b32 v12, 0\ns_mov_b64 exec, 1\n"
            for k in range(self.nst):
                t += f"v_mov_b32 v13, s{84+k}\nbuffer_store_dword v13, v12, s[{SWS}:{SWS+3}], s82 offen offset:{4*k}\n"
        t += "s_endpgm"
        self.p.straight(Is(t), name="end")
    def stage_adv(self, pos=cPOS, step=8192):
        if step == 8192:
            ins = Is(f"s_add_u32 s{pos}, s{pos}, {step}\ns_cmp_eq_u32 s{pos}, {RING}\ns_cselect_b32 s{pos}, 0, s{pos}")
        else:
            ins = Is(f"s_add_u32 s{pos}, s{pos}, {step}\ns_cmp_ge_u32 s{pos}, {RING}\ns_cselect_b32 s{cTMP2}, {RING}, 0\ns_sub_u32 s{pos}, s{pos}, s{cTMP2}")
        for i in ins: i.meta['noprol'] = True
        return ins
    def loop_end(self, label):
        return Is(f"s_sub_u32 s{CNT}, s{CNT}, 1\ns_cmp_lg_u32 s{CNT}, 0\ns_cbranch_scc1 {label}")
    def add_loop(self, body, count, name, prol=True, epil=True, pre=None):
        lin = body.linear()
        label = self.lab(name)
        if prol:
            pr = []
            for i in lin:
                if i.tag == 1 and not i.meta.get('noprol'):
                    c = i.clone(); c.meta.pop('adv', None); c.meta.pop('junk_last', None); pr.append(c)
            self.p.straight((pre or []) + pr + [I(f"s_mov_b32 s{CNT}, {count}")], name=name + " prologue")
        ep = [i.clone() for i in lin if i.tag == -1] if epil else []
        for e in ep:
            if e.meta.get('active') is not None:
                f = e.meta['active']; e.meta['active'] = (lambda it, f=f: f(count))
        self.p.loop(lin + self.loop_end(label), count, label, name=name)
        return ep

def place_frags(body, frags, NS, stage):
    F = len(frags); n = body.n
    chain = []
    g = 0
    for k in range(NS, F + NS):
        fr = frags[k % F]; prev = frags[k - NS]
        e = prev['u'] + prev['n'] - 1
        tag = 1 if k >= F else 0
        for grp in fr.get('pre', []):
            cost = sum(i.cost for i in grp)
            gg = max(g, e - 2) if grp[0].meta.get('noprol') else max(g, e - 1)
            chain.append((gg, grp, tag)); g = gg
        for j, r in enumerate(fr['reads']):
            gg = max(g + (1 if (chain and any(i.kind == 'ldsr' for i in chain[-1][1]) ) else 0), e)
            if tag:
                r.meta['junk_last'] = True
            chain.append((gg, [r], tag)); g = gg
    for (gg, grp, tag) in chain:
        if gg >= n:
            for i in grp:
                i.tag = tag; i.meta.pop('junk_last', None)
            body.put(gg, grp)
    for (gg, grp, tag) in chain:
        if gg < n:
            for i in grp: i.tag = tag
            body.put(gg, grp)

def bar(**kw):
    return I("s_barrier", **kw)

def prologue(ctx, role_code):
    t = f"""
v_and_b32 v{vLANE}, 63, v0
v_lshlrev_b32 v{vL16}, 4, v{vLANE}
v_lshrrev_b32 v{vHT}, 4, v{vLANE}
v_sub_u32 v{vHT}, 0, v{vHT}
v_and_b32 v{vHT}, 3, v{vHT}
v_lshrrev_b32 v{vA0}, 2, v{vLANE}
v_lshlrev_b32 v{vA0}, 6, v{vA0}
v_bfe_u32 v{vA1}, v{vLANE}, 1, 1
v_xor_b32 v{vA1}, v{vA1}, v{vHT}
v_lshl_add_u32 v{vLPN}, v{vA1}, 4, v{vA0}
v_and_b32 v{vA1}, 1, v{vLANE}
v_lshl_add_u32 v{vLPN}, v{vA1}, 3, v{vLPN}
v_and_b32 v{vA1}, 3, v{vLANE}
v_xor_b32 v{vA1}, v{vA1}, v{vHT}
v_lshl_add_u32 v{vLPI}, v{vA1}, 4, v{vA0}
v_bfe_u32 v{vA0}, v{vLANE}, 2, 2
v_sub_u32 v{vA0}, 0, v{vA0}
v_lshrrev_b32 v{vA1}, 4, v{vLANE}
v_xor_b32 v{vA0}, v{vA0}, v{vA1}
v_and_b32 v{vA0}, 3, v{vA0}
v_and_b32 v{vA1}, 15, v{vLANE}
v_lshlrev_b32 v{vA1}, 6, v{vA1}
v_lshl_add_u32 v{vLPK}, v{vA0}, 4, v{vA1}
s_lshl_b32 s{pSTART}, s{sW}, 10
s_mov_b32 s{pWR}, s{pSTART}
s_add_u32 s{pEND}, s{pSTART}, {RING}
s_mov_b32 s{cPOS}, 0
s_lshl_b32 s{sC32}, s{sC}, 5
s_lshl_b32 s{sC1K}, s{sC}, 10
s_lshl_b32 s{sC2K}, s{sC}, 11
s_lshl_b32 s{sXA}, s{sR2}, 12
s_add_u32 s{sXB}, s{sXA}, 2048
s_add_u32 s{sXA}, s{sXA}, s{sC2K}
s_sub_u32 s{sXB}, s{sXB}, s{sC2K}
s_lshl_b32 s{sTMP}, s{sW}, 12
s_add_u32 s{sTMP}, s{sTMP}, {AUX}
v_add_u32 v{vXW}, s{sTMP}, v{vL16}
v_xor_b32 v{vXR}, 4096, v{vXW}
""" + role_code
    ctx.p.straight(Is(t), name="prologue")

def xn_reg(m, rt, j):
    f = rt * 18 + j
    return ('a', 4*f) if f < 64 else ('v', m['xnv'] + 4*(f - 64))

def phase_X(ctx, m, L):
    ctx.seg(36, PWS, SZ['x'], 1152, False,
            f"s_lshl_b32 s{hT0}, s{sRB}, 7\ns_lshl_b32 s{hT1}, s{sW}, 4\ns_add_u32 s{hT0}, s{hT0}, s{hT1}\ns_mul_i32 s{pOFF}, s{hT0}, 1152",
            64*1152, 2, 64 - 64*1152)
    ins = []
    for k in range(L): ins += ctx.dma_flat()
    for j in range(18):
        if j:
            ins += ctx.stage_adv()
        ins += Is(f"s_add_u32 s{cTMP}, s{cPOS}, s{sXA}")
        a0 = I(f"v_xor_b32 v{vA0}, s{cTMP}, v{vLPK}")
        if j: a0.meta['adv'] = [('c', 2)]
        else: a0.meta['setptr'] = [('c', 0)]
        ins.append(a0)
        ins += Is(f"s_add_u32 s{cTMP}, s{cPOS}, s{sXB}\nv_xor_b32 v{vA1}, s{cTMP}, v{vLPK}")
        ins.append(bar())
        for rt in range(4):
            a = vA0 if rt < 2 else vA1
            ins.append(I(f"ds_read_b128 {R4(xn_reg(m, rt, j))}, v{a} offset:{(rt & 1)*1024}", rq=('c', rt & 1)))
        ins += ctx.dma_flat() + ctx.dma_flat()
    adv = ctx.stage_adv()
    adv[0].meta['adv'] = [('c', 2)]
    ins += adv
    ctx.p.straight(ins, name="X")

def phase_F1(ctx, m, nk, nstash, bar_every=2):
    ctx.seg(18*nk, PW1, SZ['w1'], 9216, True,
            f"s_lshr_b32 s{hT0}, s{sW}, 1\ns_lshl_b32 s{hT0}, s{hT0}, 5\ns_lshl_b32 s{hT1}, s{sC}, 2\ns_add_u32 s{hT0}, s{hT0}, s{hT1}\ns_mul_i32 s{pOFF}, s{hT0}, 9216\ns_lshl_b32 s{hT0}, s{sHB}, 1\ns_add_u32 s{pOFF}, s{pOFF}, s{hT0}",
            64*9216, 9, 64 - 8*64*9216)
    NS = m['NS']; stg = m['stg']; acc = m['acc1']; H = m['H']; tmp = m['tmp']
    bb = []; frags = []
    for s in range(2):
        for j in range(18):
            f = s*18 + j
            st = (stg[0], stg[1] + 4*(f % NS))
            u = len(bb)
            for rt in range(4):
                d = ('v', acc + 16*s + 4*rt)
                bb.append(mfma(d, st, xn_reg(m, rt, j), None if j == 0 else d))
            kk = f % 4
            reads = [I(f"ds_read_b64_tr_b16 {R2(st, h)}, v{vA0} offset:{kk*2048 + h*1024}", rq=('c', kk >> 1)) for h in range(2)]
            pre = []
            if kk == 0:
                pre.append(ctx.stage_adv())
                g = Is(f"s_or_b32 s{cTMP}, s{cPOS}, s{sC32}\nv_xor_b32 v{vA0}, s{cTMP}, v{vLPN}")
                g[1].meta['adv'] = [('c', 2)]
                pre.append(g)
                if (f // 4) % bar_every == 0: pre.append([bar()])
            frags.append(dict(u=u, n=4, reads=reads, pre=pre))
    body = Body(bb)
    place_frags(body, frags, NS, None)
    ctx.place_dma(body, 18)
    Hall = [f"v{H+i}" for i in range(m['nH']*16)]
    for s in range(2):
        g = 72*(s+1) + 3
        for rt in range(4):
            a = acc + 16*s + 4*rt
            t = tmp + 2*(rt & 1)
            cv = Is(f"v_cvt_pk_bf16_f32 v{t}, v{a}, v{a+1}\nv_cvt_pk_bf16_f32 v{t+1}, v{a+2}, v{a+3}")
            g = body.fit(g, g + 8, cv)
            dst = H + 4*rt + 2*s
            mx = [I(f"s_set_gpr_idx_on s{sIDX}, gpr_idx(DST)"), I(f"v_pk_max_i16 v{dst}, v{t}, 0", wr=Hall), I(f"v_pk_max_i16 v{dst+1}, v{t+1}, 0", wr=Hall), I("s_set_gpr_idx_off")]
            g = body.fit(g + 1, g + 8, mx)
        if s == 1:
            last = H + (m['nH'] - 1)*16
            if nstash:
                for rt in range(4):
                    wr = [I(f"s_mov_b64 exec, s[{sMSK}:{sMSK+1}]"), I(f"ds_write_b128 v{vA2}, v[{last+4*rt}:{last+4*rt+3}] offset:{rt*1024}", active=(lambda it: 1 <= it <= nstash)), I("s_mov_b64 exec, -1")]
                    g = body.fit(g + 4, g + 10, wr)
                g = body.fit(g + 1, g + 6, Is(f"v_add_u32 v{vA2}, 4096, v{vA2}"))
            upd = Is(f"s_sub_u32 s{sTMP}, {nk - nstash}, s{CNT}\ns_lshl_b32 s{sTMP}, s{sTMP}, 4\ns_cmp_gt_u32 s{CNT}, {nk - nstash}\ns_cselect_b32 s{sIDX}, {(m['nH']-1)*16}, s{sTMP}")
            g = body.fit(g, g + 4, upd)
            if nstash:
                g = body.fit(g, g + 4, Is(f"s_cmp_gt_u32 s{CNT}, {nk - nstash}\ns_cselect_b64 s[{sMSK}:{sMSK+1}], -1, 0"))
            assert g < 72*2 + 72, g
            for i in upd: i.meta['noepil'] = True
    pre = Is(f"s_mov_b32 s{sIDX}, {(m['nH']-1)*16}\ns_mov_b64 s[{sMSK}:{sMSK+1}], 0\ns_lshl_b32 s{sTMP}, s{sW}, 14\ns_add_u32 s{sTMP}, s{sTMP}, {AUX - 4096}\nv_add_u32 v{vA2}, s{sTMP}, v{vL16}")
    ep = ctx.add_loop(body, nk, "F1", pre=pre)
    ep = [e for e in ep if e.kind in ('valu',) and not e.text.startswith('v_add_u32') or e.mn.startswith('s_set_gpr')]
    ctx.p.straight(ep, name="F1 epilogue")
    print(ctx.p.name, "F1 overload", body.over())

def phase_G2(ctx, m, ksteps, segargs, spart, name, bar_every=2, pre=None):
    nq = len(ksteps)
    ctx.seg(18*nq, *segargs)
    NS = m['NS2']; stg = m['stg2']; accs = m['acc2']; rcv = m['rcv']; pk = m['pk']
    bb = []; frags = []
    pend = []
    f = 0
    for pp in range(2):
        first = [True, True]
        started = set()
        for qi, ks in enumerate(ksteps):
            gq = pp*nq + qi
            firstfrag = True
            for (Bf, nrt, off, setbase) in ks:
                for t in range(2):
                    st = (stg[0], stg[1] + 4*(f % NS))
                    u = len(bb)
                    for rt in range(nrt):
                        d = ('v', accs[pp] + 16*t + 4*rt)
                        bb.append(mfma(d, st, Bf(rt), d if (t, rt) in started else None))
                        started.add((t, rt))
                    a = vA0 if t == 0 else vA1
                    reads = [I(f"ds_read_b64_tr_b16 {R2(st, h)}, v{a} offset:{(gq & 1)*4096 + off + h*2048}", rq=('c', gq & 1)) for h in range(2)]
                    pr = []
                    if firstfrag and gq % 2 == 0:
                        pr.append(ctx.stage_adv())
                        if setbase: g = Is(f"s_add_u32 s{cTMP}, s{cPOS}, s{sC1K}\nv_xor_b32 v{vA0}, s{cTMP}, v{vLPN}\nv_xor_b32 v{vA1}, 32, v{vA0}")
                        else: g = Is(f"s_mov_b32 s{cTMP}, s{cPOS}\nv_xor_b32 v{vA0}, s{cTMP}, v{vLPN}\nv_xor_b32 v{vA1}, 32, v{vA0}")
                        g[1].meta['adv'] = [('c', 2)]
                        pr.append(g)
                        if (gq // 2) % bar_every == 0: pr.append([bar()])
                    firstfrag = False
                    frags.append(dict(u=u, n=nrt, reads=reads, pre=pr))
                    f += 1
        pend.append(len(bb))
    assert len(frags) % NS == 0, (len(frags), NS)
    body = Body(bb)
    place_frags(body, frags, NS, None)
    ctx.place_dma(body, 2*nq)
    n = body.n
    bars = [g for g in range(n) if any(i.kind == 'bar' for i in body.gaps[g])]
    bars = bars + [b + n for b in bars] + [b + 2*n for b in bars]
    for pp in range(2):
        e = pend[pp]
        span = (pend[1] - pend[0] if pp == 0 else pend[0])
        lim = e + span
        sp = 4 if span >= 80 else 2
        g = e + 2 - sp
        for k, (t, rt) in enumerate([(0, 2), (0, 3), (1, 2), (1, 3)]):
            a = accs[pp] + 16*t + 4*rt
            w = I(f"ds_write_b128 v{vXW}, v[{a}:{a+3}] offset:{pp*16384 + k*1024}", pub=True)
            base = e + 2 + sp*k
            g = body.fit(max(base, g + 1), max(base + sp - 1, g + 1), w)
        nb = min(b for b in bars if b >= g + 4)
        if nb > e + (span * 45) // 100:
            nb = body.put(g + 4, [bar(drain_w=True, ring=False)])
        else:
            for i in body.gaps[nb % n]:
                if i.kind == 'bar': i.meta['drain_w'] = True
        g = nb
        gr = []
        for k in (0, 2, 1, 3):
            r = I(f"ds_read_b128 v[{rcv+4*k}:{rcv+4*k+3}], v{vXR} offset:{pp*16384 + k*1024}")
            g = body.fit(g + 1, g + sp//2, r)
            gr.append(g)
        st = sSTA if pp == 0 else sSTB
        ops = []
        for rt in range(2):
            for t in range(2):
                k = t*2 + rt
                a = accs[pp] + 16*t + 4*rt
                for h in range(4):
                    ops.append(I(f"v_add_f32 v{a+h}, v{a+h}, v{rcv+4*k+h}"))
                for h in range(2):
                    ops.append(I(f"v_cvt_pk_bf16_f32 v{pk+4*rt+2*t+h}, v{a+2*h}, v{a+2*h+1}"))
            ops.append(I(f"buffer_store_dwordx4 v[{pk+4*rt}:{pk+4*rt+3}], v{vL16}, s[{SWS}:{SWS+3}], s{st} offen offset:{rt*1024} sc1"))
        g0 = gr[0] + 7
        avail = lim - 2 - g0
        g = g0
        for k, op in enumerate(ops):
            hi = g0 + ((k + 1) * avail) // len(ops)
            g = body.fit(g, max(g, hi), op)
        assert g < lim, (name, pp, g, lim)
        if pp == 0:
            u = Is(f"s_add_u32 s{sSTB}, s{sSTA}, 8192\ns_add_u32 s{sSTA}, s{sSTA}, 16384")
            body.fit(g, g, u)
    pre = (pre or []) + Is(f"s_mul_i32 s{sSTA}, s{sRB}, {NP*PSZ}\ns_mul_i32 s{sTMP}, s{spart}, {PSZ}\ns_add_u32 s{sSTA}, s{sSTA}, s{sTMP}\ns_lshl_b32 s{sTMP}, s{sW}, 11\ns_add_u32 s{sSTA}, s{sSTA}, s{sTMP}\ns_add_u32 s{sSTA}, s{sSTA}, {PART_OFF}\ns_mov_b32 s{sSTB}, 0xf0000000")
    ep = ctx.add_loop(body, 9, name, pre=pre)
    out = []
    done = False
    for e in ep:
        if e.kind == 'bar': continue
        if e.kind == 'ldsr' and not done:
            out.append(bar(drain_w=True, ring=False)); done = True
        out.append(e)
    ctx.p.straight(out, name=name + " epilogue")
    print(ctx.p.name, name, "overload", body.over(), "n", n)
```

```python
from mainlib import *
NKF = 13; NKM = 5
LTHR = 0x49800000

def q_epilogue(ctx, m, body, frags, nrt, dstf, Qall, ntrip, name, st0, shift, touch=None):
    acc = m['acc1']; tm = m['qtmp']; n = body.n
    for k in range(8):
        a = acc + 4*k
        for e in range(4):
            body.fit(n - 8 + k + 4, n + k - 1, I(f"v_mul_f32 v{tm+4*k+e}, s{sSCALE}, v{a+e}"))
    plc = ctx.place_dma_big(body, 9, lo=10, hi=n - 6)
    tpre = place_touch(body, touch, 70, 130)
    place_stage_ops(body, frags)
    free = ctx.place_dma_small(body, plc)
    items = []
    for k in range(8):
        d = dstf(k)
        items.append(idxgrp(Is(f"v_cvt_pk_bf16_f32 v{d}, v{tm+4*k}, v{tm+4*k+1}\nv_cvt_pk_bf16_f32 v{d+1}, v{tm+4*k+2}, v{tm+4*k+3}"), Qall))
    g = body.chain(items, n + 8, n + 100, allow=free)
    body.chain(Is(f"s_sub_u32 s{sIDX}, {ntrip}, s{CNT}\ns_lshl_b32 s{sIDX}, s{sIDX}, 4"), g + 1, g + 6)
    ep = ctx.add_loop(body, ntrip, name, pre=Is(f"s_mov_b32 s{sIDX}, 0") + tpre + ctx.setpos(st0, 1, shift))
    ep = [e for e in ep if e.kind == 'valu' or e.mn.startswith('s_set_gpr')]
    ctx.p.straight(Is(f"s_mov_b32 s{sTMP}, m0") + ep + Is(f"s_mov_b32 m0, s{sTMP}"), name=name + " epilogue")

WQROW = f"s_lshl_b32 s{hT0}, s{sR2}, 18\ns_lshl_b32 s{hT1}, s{sC}, 15\ns_add_u32 s{hT0}, s{hT0}, s{hT1}\n"
def phase_Qp4(ctx, m, touch=None):
    st0 = ctx.seg(36, PWQ, None, SZ['wq'], 8192, True, WQROW + f"s_lshl_b32 s{hT1}, s{sH0}, 8\ns_add_u32 s{hT0}, s{hT0}, s{hT1}",
                  256, (0, 64*8192, -(9*64*8192 - 64)))
    body, frags = gemm1_body(ctx, m, 4, [0, 8], vLPI, m['NS'])
    Q = m['Q']
    q_epilogue(ctx, m, body, frags, 4, lambda k: Q + 4*(k & 3) + 2*(k >> 2), [f"v{Q+i}" for i in range(64)], 4, "Qp4", st0, 10, touch)

def phase_Qp2(ctx, m):
    st0 = ctx.seg(18, PWQ, None, SZ['wq'], 8192, True, WQROW + f"s_lshl_b32 s{hT1}, s{sH3}, 8\ns_add_u32 s{hT0}, s{hT0}, s{hT1}",
                  64, (0, 64*8192, -(9*64*8192 - 128)))
    body, frags = gemm1_body(ctx, m, 2, [0, 8, 1024, 1032], vLPI, 8)
    Q = m['Q3']
    q_epilogue(ctx, m, body, frags, 2, lambda k: Q + 8*(k >> 2) + 4*(k & 1) + 2*((k >> 1) & 1), [f"v{Q+i}" for i in range(32)], 2, "Qp2", st0, None)

def rowmax_reduce(x, t):
    return Is(f"""v_mov_b32 v{t}, v{x}
v_permlane32_swap_b32 v{t}, v{x}
v_max_f32 v{x}, v{x}, v{t}
v_mov_b32 v{t}, v{x}
v_permlane16_swap_b32 v{t}, v{x}
v_max_f32 v{x}, v{x}, v{t}""")

def phase_At(ctx, m, nrt, shead, Q, name, owrite, extra=None, touch=None):
    if ctx.pos % 2:
        ctx.seg(1)
        ctx.p.straight(ctx.dma_flat(), name="pad stage")
    st0 = ctx.seg(32, PK, PV, SZ['k'], 256, False,
                  f"s_lshr_b32 s{hT0}, s{shead}, 1\ns_lshl_b32 s{hT0}, s{hT0}, 19\ns_lshl_b32 s{hT1}, s{sW}, 6\ns_add_u32 s{hT0}, s{hT0}, s{hT1}\ns_add_u32 s{hT0}, s{hT0}, {1536*256}",
                  0, (0, 4096, 0))
    NS = 8
    stg = m['astg']; Sb = m['S']; Pb = m['P']; NM = m['negm']; ONES = m['ones']; Ob = 0; Lb = 128; T = m['atmp']
    S = lambda kt, rt: ('v', Sb + 4*(kt*nrt + rt))
    P = lambda par, rt: ('v', Pb + 16*par + 4*rt)
    Qf = lambda j, rt: ('v', Q + 4*(j*nrt + rt))
    O = lambda dt, rt: ('a', Ob + 4*(dt*nrt + rt))
    L = lambda rt: ('a', Lb + 4*rt)
    neg = lambda rt: ('v', NM + 4*rt)
    kread = lambda st, kt, j, **kw: I(f"ds_read_b128 {R4(st)}, v{vA2} offset:{kt*8192 + j*2048}", rq=('c', kt), **kw)
    Hn = 17*nrt
    bb = []; frags = []; f = 0
    for hb in range(2):
        for kt in range(2):
            for j in range(4):
                st = (stg[0], stg[1] + 4*(f % NS)); u = len(bb)
                for rt in range(nrt):
                    bb.append(mfma(S(kt, rt), st, Qf(j, rt), neg(rt) if j == 0 else S(kt, rt), w='qk'))
                fr = dict(u=u, n=nrt, reads=[kread(st, kt, j, w='k', khalf=hb)], w='k')
                if kt == 0 and j == 0:
                    sal = Is(f"s_mov_b32 s{cPREV}, s{cPOS}") + ctx.adv(16384)
                    ad = [I(f"v_xor_b32 v{vA2}, s{cPOS}, v{vLPK}", adv=[('c', 2)])]
                    b = bar()
                    for i in sal + ad + [b]: i.meta['w'] = 'k'
                    fr['stage'] = dict(addr=ad, sal=sal, bar=b)
                frags.append(fr); f += 1
        for rt in range(nrt):
            bb.append(mfma(L(rt), ('v', ONES), P(hb, rt), L(rt), w='pv'))
        for dt in range(8):
            st = (stg[0], stg[1] + 4*(f % NS)); u = len(bb)
            for rt in range(nrt):
                bb.append(mfma(O(dt, rt), st, P(hb, rt), O(dt, rt), w='pv'))
            a = vA0 if dt % 2 == 0 else vA1
            rs = [I(f"ds_read_b64_tr_b16 {R2(st, h)}, v{a} offset:{h*8192 + (dt >> 1)*2048 + 1024}", rq=('v', h), w='v') for h in range(2)]
            fr = dict(u=u, n=nrt, reads=rs, w='v')
            if dt == 0:
                ad = [I(f"v_xor_b32 v{vA0}, s{cPREV}, v{vLPN}", adv=[('v', 2)], w='v'), I(f"v_xor_b32 v{vA1}, 32, v{vA0}", w='v')]
                fr['stage'] = dict(addr=ad, after=len(frags) - 8)
            frags.append(fr); f += 1
    body = Body(bb); n = body.n
    place_reads(body, frags, NS)
    plc = ctx.place_dma_big(body, 2, lo=0, hi=Hn - 1, sep=3*nrt) + ctx.place_dma_big(body, 2, lo=Hn, hi=n - 1, sep=3*nrt)
    tpre = place_touch(body, touch, 4, Hn - 4)
    cv = []
    for hb in (1, 0):
        B0 = hb*Hn; par = (hb + 1) & 1
        for kt in range(2):
            for rt in range(nrt):
                s = S(kt, rt)[1]
                lo = B0 + kt*4*nrt + 3*nrt + rt + 4
                hi = min(B0 + Hn + kt*4*nrt + rt - 1, B0 + Hn + 8*nrt - 3)
                for h in range(2):
                    gs = [body.fit(lo, hi - 1, I(f"v_exp_f32 v{s+2*h+e}, v{s+2*h+e}", w='e', eh=hb)) for e in range(2)]
                    cv.append((max(gs) + 1, hi, I(f"v_cvt_pk_bf16_f32 v{P(par, rt)[1] + 2*kt + h}, v{s+2*h}, v{s+2*h+1}", w='e', eh=hb)))
    for lo, hi, i in cv: body.fit(lo, hi, i, tight=True)
    place_stage_ops(body, frags)
    ctx.place_dma_small(body, plc)
    for i in body.lin(0, Hn):
        if i.meta.get('khalf') == 1: i.meta['junk_last'] = True
    lin1 = body.lin(Hn)
    pr = ctx.setpos(st0, 0, None) + [I(f"v_xor_b32 v{vA2}, s{cPOS}, v{vLPK}", setptr=[('v', st0 - 2)]), bar(drain_w=True)]
    fr8 = [(kt, j) for kt in range(2) for j in range(4)]
    pst = lambda k: (stg[0], stg[1] + 4*(k % NS))
    for k in range(8): pr.append(kread(pst(k), *fr8[k]))
    pr += (extra or []) + tpre
    for e in range(4): pr.append(I(f"v_mov_b32 v{ONES+e}, 0x3f803f80"))
    zero = [I(f"v_accvgpr_write_b32 a{Ob+i}, 0") for i in range(32*nrt)] + [I(f"v_accvgpr_write_b32 a{Lb+i}, 0") for i in range(4*nrt)]
    chain = []
    for rt in range(nrt):
        s = S(0, rt)[1]; x = T + rt
        chain += Is(f"v_max3_f32 v{x}, v{s}, v{s+1}, v{s+2}\nv_max_f32 v{x}, v{x}, v{s+3}")
    rm = [rowmax_reduce(T + rt, T + 4 + rt) for rt in range(nrt)]
    for k in range(6):
        for rt in range(nrt): chain.append(rm[rt][k])
    for rt in range(nrt):
        for e in range(4): chain.append(I(f"v_sub_f32 v{NM+4*rt+e}, 0, v{T+rt}"))
    pr += zero[:16]; zero = zero[16:]
    for k, (kt, j) in enumerate(fr8):
        for rt in range(nrt):
            pr.append(mfma(S(kt, rt), pst(k), Qf(j, rt), None if j == 0 else S(kt, rt)))
            src = zero if (kt == 0 or j == 0) else chain
            pr += src[:3]; del src[:3]
    pr += chain + zero
    for kt in range(2):
        for rt in range(nrt):
            s = S(kt, rt)[1]
            for e in range(4): pr.append(I(f"v_add_f32 v{s+e}, v{s+e}, v{NM+4*rt}"))
    for i in lin1:
        if i.meta.get('w') == 'e' and i.meta.get('eh') == 1 and i.tag == 0: i.meta['prol'] = True
    extra_pr = []
    for i in body.lin():
        if i.tag == 1 or i.meta.get('prol'):
            c = i.clone(); c.meta.pop('junk_last', None); extra_pr.append(c)
    saved = [(i, i.tag) for i in body.lin() if i.tag == 1]
    for i, t in saved: i.tag = 2
    rest = ctx.add_loop(body, 8, name, pre=pr + extra_pr, exit_gap=Hn - 1)
    ep = [rest[0]]
    for c in rest[1:]:
        w = c.meta.get('w')
        if w in ('qk', 'k') or (w == 'e' and c.meta['eh'] == 1) or c.tag == 2: continue
        ep.append(c)
    lslow = ctx.lab(name + "slow"); lnorm = ctx.lab(name + "norm")
    for rt in range(nrt): ep.append(I(f"v_accvgpr_read_b32 v{T+rt}, a{Lb+4*rt}"))
    if nrt == 4: ep += Is(f"v_add_f32 v{T+5}, v{T}, v{T+1}\nv_add_f32 v{T+4}, v{T+2}, v{T+3}\nv_add_f32 v{T+4}, v{T+4}, v{T+5}")
    else: ep += Is(f"v_add_f32 v{T+4}, v{T}, v{T+1}")
    ep += Is(f"v_cmp_ngt_f32 vcc, {LTHR}, v{T+4}\ns_nop 4\ns_cbranch_vccnz {lslow}")
    ep.append(I(f"{lnorm}:"))
    for rt in range(nrt): ep += Is(f"v_accvgpr_read_b32 v{T+rt}, a{Lb+4*rt}")
    for rt in range(nrt): ep += Is(f"v_rcp_f32 v{T+rt}, v{T+rt}")
    ep += m['oaddr'](nrt)
    for u in range(4):
        for rt in range(nrt):
            d = Pb + 4*((u*nrt + rt) % 8)
            for hh in range(2):
                o = O(2*u + hh, rt)[1]; tt = T + 4 + 4*hh
                for e in range(4): ep.append(I(f"v_accvgpr_read_b32 v{tt+e}, a{o+e}"))
                for e in range(4): ep.append(I(f"v_mul_f32 v{tt+e}, v{tt+e}, v{T+rt}"))
                ep += Is(f"v_cvt_pk_bf16_f32 v{d+2*hh}, v{tt}, v{tt+1}\nv_cvt_pk_bf16_f32 v{d+2*hh+1}, v{tt+2}, v{tt+3}")
            a, off = owrite(u, rt)
            ep.append(I(f"ds_write_b128 v{a}, v[{d}:{d+3}] offset:{off}", pub=True))
    ctx.p.straight(ep, name=name + " epilogue")
    sp = Program(ctx.p.name + "slow")
    so, sm0 = sSL + 4, sSL + 5
    vD, vK, vV0, vV1 = T + 12, T + 13, T + 14, T + 15
    head = Is(f"""{lslow}:
s_waitcnt vmcnt(0) lgkmcnt(0)
s_nop 7
s_mov_b32 s{sm0}, m0
s_mov_b32 s{sSL+2}, {SZ['k']}
s_mov_b32 s{sSL+3}, 0x00020000
v_lshrrev_b32 v{vK}, 2, v{vLANE}
v_lshlrev_b32 v{vK}, 8, v{vK}
v_lshrrev_b32 v{vD}, 4, v{vLANE}
v_sub_u32 v{vD}, 0, v{vD}
v_xor_b32 v{vD}, v{vD}, v{vLANE}
v_and_b32 v{vD}, 3, v{vD}
v_lshl_add_u32 v{vD}, v{vD}, 4, v{vK}
v_add_u32 v{vK}, s{sPRIV}, v{vLPK}
v_add_u32 v{vV0}, s{sPRIV}, v{vLPN}
v_xor_b32 v{vV1}, 32, v{vV0}
""")
    initoff = f"s_lshr_b32 s{so}, s{shead}, 1\ns_lshl_b32 s{so}, s{so}, 19\ns_add_u32 s{so}, s{so}, {1536*256}\ns_mov_b32 s{CNT}, 16"
    head += Is(initoff)
    for rt in range(nrt): head.append(I(f"v_mov_b32 v{T+rt}, 0xff800000"))
    sp.straight(head, name="slow head")
    def sdma(ptr, ldsoff):
        out = Is(f"s_mov_b64 s[{sSL}:{sSL+1}], s[{ptr}:{ptr+1}]")
        for kt in range(2):
            for j in range(4):
                out += Is(f"s_add_u32 m0, s{sPRIV}, {ldsoff + kt*4096 + j*1024}\ns_add_u32 s{sTMP}, s{so}, {kt*4096 + j*64}")
                out.append(I(f"buffer_load_dwordx4 v{vD}, s[{sSL}:{sSL+3}], s{sTMP} offen lds"))
        return out
    def sqk(c0):
        out = []
        for kt in range(2):
            for j in range(4): out.append(I(f"ds_read_b128 {R4(pst(j))}, v{vK} offset:{kt*4096 + j*1024}"))
            for j in range(4):
                for rt in range(nrt): out.append(mfma(S(kt, rt), pst(j), Qf(j, rt), c0(rt) if j == 0 else S(kt, rt)))
        return out
    tail = lambda l: Is(f"s_add_u32 s{so}, s{so}, 8192\ns_sub_u32 s{CNT}, s{CNT}, 1\ns_cmp_lg_u32 s{CNT}, 0\ns_cbranch_scc1 {l}")
    l1 = ctx.lab("sl"); l2 = ctx.lab("sl")
    b1 = sdma(PK, 0) + [I("s_waitcnt vmcnt(0)")] + sqk(lambda rt: None)
    for kt in range(2):
        for rt in range(nrt):
            s = S(kt, rt)[1]
            b1 += Is(f"v_max3_f32 v{T+rt}, v{T+rt}, v{s}, v{s+1}\nv_max3_f32 v{T+rt}, v{T+rt}, v{s+2}, v{s+3}")
    sp.loop(b1 + tail(l1), 2, l1, name="slow max")
    mid = []
    for rt in range(nrt):
        mid += rowmax_reduce(T + rt, T + 4)
        for e in range(4): mid.append(I(f"v_sub_f32 v{NM+4*rt+e}, 0, v{T+rt}"))
    mid += [I(f"v_accvgpr_write_b32 a{Ob+i}, 0") for i in range(32*nrt)] + [I(f"v_accvgpr_write_b32 a{Lb+i}, 0") for i in range(4*nrt)]
    mid += Is(initoff)
    sp.straight(mid, name="slow mid")
    b2 = sdma(PK, 0) + sdma(PV, 8192) + [I("s_waitcnt vmcnt(0)")] + sqk(neg)
    for kt in range(2):
        for rt in range(nrt):
            s = S(kt, rt)[1]
            for e in range(4): b2.append(I(f"v_exp_f32 v{s+e}, v{s+e}"))
            for h in range(2): b2.append(I(f"v_cvt_pk_bf16_f32 v{P(0, rt)[1] + 2*kt + h}, v{s+2*h}, v{s+2*h+1}"))
    for rt in range(nrt): b2.append(mfma(L(rt), ('v', ONES), P(0, rt), L(rt)))
    for dt in range(8):
        a = vV0 if dt % 2 == 0 else vV1
        st = pst(dt)
        for h in range(2): b2.append(I(f"ds_read_b64_tr_b16 {R2(st, h)}, v{a} offset:{8192 + h*4096 + (dt >> 1)*1024}"))
        for rt in range(nrt): b2.append(mfma(O(dt, rt), st, P(0, rt), O(dt, rt)))
    sp.loop(b2 + tail(l2), 2, l2, name="slow attn")
    sp.straight(Is(f"s_mov_b32 m0, s{sm0}\ns_nop 7\ns_nop 7\ns_branch {lnorm}"), name="slow end")
    analyze(sp, ctx.R); hazards(sp)
    ctx.p.ool += emit(sp)

def regs_list(spec):
    out = []
    for f, s, c in spec:
        out += [(f, s + 4*i) for i in range(c // 4)]
    return out

def oaddr_pair(NMr):
    def f(nrt):
        if nrt == 4:
            return Is(f"""s_lshl_b32 s{sTMP}, s{sODD}, 13
s_lshl_b32 s{cT}, s{sC}, 11
s_add_u32 s{sTMP}, s{sTMP}, s{cT}
s_add_u32 s{sTMP}, s{sTMP}, s{sPRIV}
v_add_u32 v{NMr}, s{sTMP}, v{vL16}
v_xor_b32 v{NMr+1}, 2048, v{NMr}
v_xor_b32 v{NMr+2}, 8192, v{NMr}
v_xor_b32 v{NMr+3}, 8192, v{NMr+1}""")
        return Is(f"""s_lshl_b32 s{sTMP}, s{sODD}, 12
s_add_u32 s{sTMP}, s{sTMP}, s{sPRIV}
v_add_u32 v{NMr}, s{sTMP}, v{vL16}
v_xor_b32 v{NMr+1}, 4096, v{NMr}""")
    return f

def prog_TM(L):
    ctx = Ctx("TM", 10)
    m = dict(xnv=12, xtmp=240, Q=44, acc1=188, qtmp=108, stg=('v', 220), NS=6, tmp=140,
             S=12, P=188, negm=220, ones=236, atmp=240, astg=('a', 144),
             stg2=('a', 136), acc2=[12], pk=220)
    m['oaddr'] = oaddr_pair(m['negm'])
    prologue(ctx, f"""s_sub_u32 s{sTMP}, s{sROLE}, 8
s_mul_i32 s{sHB}, s{sTMP}, {NKM*64}
s_add_u32 s{sHB}, s{sHB}, {4*NKF*64}
s_add_u32 s{sPY}, s{sTMP}, {NP_S}
s_mov_b32 s{sPS}, s{sROLE}
s_lshl_b32 s{sH0}, s{sTMP}, 1
s_add_u32 s{sH0}, s{sH0}, 24
s_mov_b32 s{sODD}, 0
s_lshl_b32 s{sPRIV}, s{sW}, 14
s_add_u32 s{sPRIV}, s{sPRIV}, {ctx.AUX}""")
    ctx.stamp(); phase_X(ctx, m, L)
    tw1 = touch_w1(0, 250, 252, 0)
    tw1 = (tw1[0] + tw1[1](), tw1[1])
    ctx.stamp(); phase_Qp4(ctx, m, touch=[tw1, touch_lin(1, 251, 252, tb_rows(PW2, f"s_mov_b32 s{hT0}, s{sHB}"), NKM*64*1152, 4)])
    ctx.stamp(); phase_F1(ctx, m, NKM, NKM, touch=[touch_lin(0, 250, 252, tb_kv(sH0), 131072, NKM, 32), touch_lin(1, 251, 252, tb_rows(PWO, f"s_lshl_b32 s{hT0}, s{sH0}, 7"), 256*1152, NKM)])
    Hr = regs_list([('a', 0, 136), ('a', 176, 24)])
    rb = Is(f"s_mul_i32 s{sTMP}, s{sR2}, {2*NKM*4096}\ns_add_u32 s{sTMP}, s{sTMP}, {ctx.AUX}\nv_add_u32 v{vXR}, s{sTMP}, v{vL16}")
    rb.append(bar(drain_w=True, ring=False))
    for s in range(NKM):
        for kk in range(2):
            for T in range(4):
                rb.append(I(f"ds_read_b128 {R4(Hr[(2*s + kk)*4 + T])}, v{vXR} offset:{(kk*NKM + NKM - 1 - s)*4096 + T*1024}"))
    sty = g2seg(ctx, PW2, SZ['w2'], NKM, f"s_mov_b32 s{hT0}, s{sHB}")
    ctx.stamp(); phase_G2n(ctx, m, sty, NKM, lambda k, rt: Hr[k*4 + rt], lambda kk: (kk, kk + 2), sPY, "G2y", 10, pre=rb)
    NM = m['negm']
    ctx.stamp(); phase_At(ctx, m, 4, sH0, m['Q'], "At4", lambda u, rt: (NM + 2*(u >> 1) + (rt >> 1), (u & 1)*4096 + (rt & 1)*1024))
    sts = g2seg(ctx, PWO, SZ['wo'], 4, f"s_lshl_b32 s{hT0}, s{sH0}, 7")
    Or = regs_list([('a', 0, 128)])
    rb = Is(f"s_lshl_b32 s{sTMP}, s{sR2}, 15\ns_add_u32 s{sTMP}, s{sTMP}, {ctx.AUX}\nv_add_u32 v{vXR}, s{sTMP}, v{vL16}")
    rb.append(bar(drain_w=True, ring=False))
    for k in range(32): rb.append(I(f"ds_read_b128 {R4(Or[k])}, v{vXR} offset:{k*1024}"))
    ctx.stamp(); phase_G2n(ctx, m, sts, 4, lambda k, rt: Or[k*4 + rt], lambda kk: (2*kk, 2*kk + 1), sPS, "G2s", 8, pre=rb)
    ctx.seg(1000)
    ctx.end()
    return ctx.finish()

def prog_T3(L):
    ctx = Ctx("T3", 12)
    m = dict(xnv=12, xtmp=240, Q=44, Q3=108, acc1=188, qtmp=140, stg=('v', 220), NS=6,
             S=12, P=188, negm=220, ones=236, atmp=240, astg=('a', 144),
             stg2=('a', 144), acc2=[12], pk=220)
    m['oaddr'] = oaddr_pair(m['negm'])
    prologue(ctx, f"""s_lshr_b32 s{sTMP}, s{sROLE}, 1
s_mul_i32 s{sTMP}, s{sTMP}, 6
s_and_b32 s{sODD}, s{sROLE}, 1
s_lshl_b32 s{hT1}, s{sODD}, 2
s_add_u32 s{sH0}, s{sTMP}, s{hT1}
s_add_u32 s{sH3}, s{sTMP}, 2
s_add_u32 s{sH3}, s{sH3}, s{sODD}
s_mov_b32 s{sPS}, s{sROLE}
s_xor_b32 s{sPRIV}, s{sW}, s{sODD}
s_lshl_b32 s{sPRIV}, s{sPRIV}, 14
s_add_u32 s{sPRIV}, s{sPRIV}, {ctx.AUX}""")
    ctx.stamp(); phase_X(ctx, m, L)
    ctx.stamp(); phase_Qp4(ctx, m, touch=[touch_lin(0, 252, 254, tb_kv(sH0), 131072, 4, 32), touch_lin(1, 253, 254, tb_kv(sH3), 131072, 4, 32)])
    ctx.stamp(); phase_Qp2(ctx, m)
    NM = m['negm']
    two = touch_lin(0, 140, 141, tb_rows(PWO, f"s_min_u32 s{hT0}, s{sH0}, s{sH3}\ns_lshl_b32 s{hT0}, s{hT0}, 7"), 384*1152, 8)
    ctx.stamp(); phase_At(ctx, m, 4, sH0, m['Q'], "At4", lambda u, rt: (NM + 2*(u >> 1) + (rt >> 1), (u & 1)*4096 + (rt & 1)*1024), touch=[two])
    Or = regs_list([('v', 44, 64), ('a', 64, 64), ('a', 176, 64)])
    rb = Is(f"s_lshl_b32 s{sTMP}, s{sR2}, 15\ns_add_u32 s{sTMP}, s{sTMP}, {ctx.AUX}\nv_add_u32 v{vXR}, s{sTMP}, v{vL16}")
    for k in range(32): rb.append(I(f"ds_read_b128 {R4(Or[k])}, v{vXR} offset:{k*1024}"))
    ctx.stamp(); phase_At(ctx, m, 2, sH3, m['Q3'], "At2", lambda u, rt: (NM + (u >> 1), (u & 1)*2048 + rt*1024), extra=rb)
    A = 64*1152
    params = f"""s_cmp_eq_u32 s{sODD}, 0
s_cselect_b32 s{pOFF}, 0, {5*A}
s_mov_b32 s{hT2}, {U32(-A)}
s_cselect_b32 s{pINC}, {A}, s{hT2}
s_mov_b32 s{hT2}, {6*A + 128}
s_cselect_b32 s{pW2}, {U32(-(6*A - 128))}, s{hT2}"""
    sts = g2seg(ctx, PWO, SZ['wo'], 6, f"s_min_u32 s{hT0}, s{sH0}, s{sH3}\ns_lshl_b32 s{hT0}, s{hT0}, 7", params)
    rb = Is(f"""s_lshl_b32 s{sTMP}, s{sR2}, 15
s_lshl_b32 s{cT}, s{sODD}, 14
s_add_u32 s{sTMP}, s{sTMP}, s{cT}
s_add_u32 s{sTMP}, s{sTMP}, {ctx.AUX}
v_add_u32 v{vXR}, s{sTMP}, v{vL16}
v_xor_b32 v{vXW}, 16384, v{vXR}""")
    rb.append(bar(drain_w=True, ring=False))
    for k in range(4):
        for T in range(4):
            rb.append(I(f"ds_read_b128 {R4(Or[32 + k*4 + T])}, v{vXR if T < 2 else vXW} offset:{k*2048 + (T & 1)*1024}"))
    ctx.stamp(); phase_G2n(ctx, m, sts, 6, lambda k, rt: Or[k*4 + rt], lambda kk: (2*kk, 2*kk + 1), sPS, "G2s", 8, pre=rb)
    ctx.seg(1000)
    ctx.end()
    return ctx.finish()

def prog_TF(L):
    ctx = Ctx("TF", 12)
    m = dict(xnv=12, xtmp=240, H=44, nH=9, acc1=188, stg=('v', 220), NS=4, tmp=236,
             stg2=('a', 64), acc2=[188, 12], accf=[96, 128], rcv=220, pk=236, vst=[vL16, 244])
    prologue(ctx, f"s_sub_u32 s{sHB}, s{sROLE}, 12\ns_mul_i32 s{sHB}, s{sHB}, {NKF*64}\ns_add_u32 s{sPY}, s{sROLE}, {NP_S - 8}")
    ctx.stamp(); phase_X(ctx, m, L)
    nst = NKF - m['nH']
    ctx.stamp(); phase_F1(ctx, m, NKF, nst, touch=[touch_w1(0, 252, 254, 2), touch_lin(1, 253, 254, tb_rows(PW2, f"s_mov_b32 s{hT0}, s{sHB}"), NKF*64*1152, NKF)])
    Hf = lambda k, rt: ('a', 16*k + 4*rt) if k < nst else ('v', m['H'] + 16*(k - nst) + 4*rt)
    pre = Is(f"s_lshl_b32 s{sTMP}, s{sW}, 14\ns_add_u32 s{sTMP}, s{sTMP}, {ctx.AUX}\nv_add_u32 v{vA2}, s{sTMP}, v{vL16}")
    for k in range(nst*4): pre.append(I(f"ds_read_b128 a[{4*k}:{4*k+3}], v{vA2} offset:{k*1024}"))
    st = g2seg(ctx, PW2, SZ['w2'], NKF, f"s_mov_b32 s{hT0}, s{sHB}")
    ctx.stamp(); phase_G2x(ctx, m, st, NKF, Hf, sPY, "F2", 8, pre=pre)
    ctx.seg(1000)
    ctx.end()
    return ctx.finish()
```

```python
import re, os
MUT = os.environ.get('MUT', '')

def expand(op):
    op = op.strip()
    neg = op.lstrip('-')
    if neg.startswith('abs(') or neg.startswith('|'):
        neg = neg.replace('abs(', '').replace(')', '').replace('|', '')
    op = neg
    m = re.fullmatch(r'([vas])\[(\d+):(\d+)\]', op)
    if m:
        return [f"{m.group(1)}{i}" for i in range(int(m.group(2)), int(m.group(3)) + 1)]
    if re.fullmatch(r'[vas]\d+', op):
        return [op]
    if op in ('vcc', 'exec'):
        return [op]
    if op in ('m0', 'scc', 'vcc_lo', 'vcc_hi', 'exec_lo', 'exec_hi'):
        return [op[:4] if op.startswith('exec') else op[:3] if op.startswith('vcc') else op]
    return []

TRANS = ('v_exp_f32', 'v_rcp_f32', 'v_rsq_f32', 'v_sqrt_f32', 'v_log_f32')
SCC_W = ('s_add_', 's_sub_', 's_and_', 's_or_', 's_xor_', 's_lshl_', 's_lshr_', 's_cmp_', 's_addc', 's_subb', 's_min_', 's_max_', 's_andn2', 's_not', 's_bfe', 's_ashr', 's_addk', 's_cmpk', 's_lshl1', 's_lshl2', 's_lshl3', 's_lshl4', 's_bitcmp')

class I:
    __slots__ = ('text', 'kind', 'rd', 'wr', 'A', 'B', 'C', 'cost', 'tag', 'meta', 'w_lgkm', 'w_vm', 'nop', 'mn', 'pre', 'dpp')
    def __init__(self, text, tag=0, wr=None, rd=None, **meta):
        self.text = text.strip()
        self.tag = tag
        self.meta = meta
        self.w_lgkm = None; self.w_vm = None; self.nop = 0
        self.pre = []
        self.A = self.B = self.C = []
        t = self.text.split(';')[0].strip()
        if t.endswith(':'):
            self.kind = 'label'; self.rd = []; self.wr = []; self.cost = 0; self.mn = ''; self.dpp = False
            return
        parts = t.split(None, 1)
        mn = parts[0]; self.mn = mn
        rest = parts[1] if len(parts) > 1 else ''
        ops = [o.strip() for o in re.split(r',(?![^\[\(]*[\]\)])', rest)] if rest else []
        mods = ''
        if ops:
            lp = ops[-1].split(None, 1)
            if len(lp) > 1 and not ops[-1].startswith('gpr_idx') and not ops[-1].startswith('hwreg'):
                ops[-1] = lp[0]; mods = lp[1]
        self.dpp = ('row_' in mods or 'quad_perm' in mods)
        R = []; W = []
        E = [expand(o) for o in ops]
        if mn.startswith('v_mfma'):
            self.kind = 'mfma'; W = E[0]; self.A = E[1]; self.B = E[2]; self.C = E[3]; R = E[1] + E[2] + E[3]; self.cost = 8
        elif mn.startswith('ds_read') or mn.startswith('ds_bpermute') or mn.startswith('ds_swizzle'):
            self.kind = 'ldsr'; W = E[0]; R = sum(E[1:], []); self.cost = 8
        elif mn.startswith('ds_write'):
            self.kind = 'ldsw'; R = sum(E, []); self.cost = 8
        elif mn.startswith('buffer_load'):
            if re.search(r'\blds\b', mods):
                self.kind = 'dma'; R = sum(E, []) + ['m0']
            else:
                self.kind = 'vload'; W = E[0]; R = sum(E[1:], [])
            self.cost = 8
        elif mn.startswith('buffer_store'):
            self.kind = 'vstore'; R = sum(E, []); self.cost = 8
        elif mn.startswith('buffer_atomic'):
            self.kind = 'vstore'; R = sum(E, []); self.cost = 8
            if 'sc0' in mods: self.kind = 'vload'; W = E[0]
        elif mn.startswith('buffer_'):
            self.kind = 'vstore'; self.cost = 8
        elif mn.startswith('v_'):
            self.kind = 'trans' if mn.replace('_e32', '').replace('_e64', '') in TRANS else 'valu'
            self.cost = 8 if self.kind == 'trans' else 4
            if mn.startswith('v_permlane'):
                W = E[0] + E[1]; R = E[0] + E[1]; self.cost = 8
            elif mn.startswith('v_cmp'):
                W = E[0]; R = sum(E[1:], [])
            elif mn.startswith('v_add_co') or mn.startswith('v_addc_co'):
                W = E[0] + E[1]; R = sum(E[2:], [])
            elif mn == 'v_nop':
                pass
            else:
                W = E[0]; R = sum(E[1:], [])
                if mn.startswith('v_fmac') or mn.startswith('v_dot2c') or self.dpp: R = R + E[0]
        elif mn == 's_barrier':
            self.kind = 'bar'; self.cost = 0
        elif mn == 's_waitcnt':
            self.kind = 'wait'; self.cost = 0
        elif mn == 'WPH':
            self.kind = 'wph'; self.cost = 0; R = sum(E, [])
        elif mn == 's_nop':
            self.kind = 'nop'; self.cost = 0
        elif mn.startswith('s_cbranch') or mn == 's_branch' or mn == 's_endpgm':
            self.kind = 'branch'; self.cost = 0
            if 'scc' in mn: R = ['scc']
            if 'vcc' in mn: R = ['vcc']
            if 'exec' in mn: R = ['exec']
        elif mn.startswith('s_load') or mn.startswith('s_memtime') or mn.startswith('s_memrealtime'):
            self.kind = 'smem'; W = E[0]; R = sum(E[1:], []); self.cost = 0
        elif mn.startswith('s_'):
            self.kind = 'salu'; self.cost = 0
            if mn.startswith('s_cmp') or mn.startswith('s_bitcmp'):
                R = sum(E, []); W = ['scc']
            elif mn == 's_set_gpr_idx_on':
                R = E[0]; W = ['m0']
            elif mn in ('s_set_gpr_idx_off', 's_setprio', 's_sleep'):
                pass
            else:
                W = list(E[0]); R = sum(E[1:], [])
                if mn.startswith('s_cselect') or mn.startswith('s_addc') or mn.startswith('s_subb'): R = R + ['scc']
                if any(mn.startswith(p) for p in SCC_W): W = W + ['scc']
                if 'saveexec' in mn: W = W + ['exec', 'scc']; R = R + ['exec']
                if mn.startswith('s_addk'): R = R + E[0]
        else:
            raise ValueError("unknown instr " + text)
        self.rd = R if rd is None else rd
        self.wr = W if wr is None else wr
    def clone(self):
        c = I(self.text, self.tag, wr=list(self.wr), rd=list(self.rd), **dict(self.meta))
        return c
    def __repr__(self):
        return f"<{self.text}>"

def Is(s, **kw):
    return [I(l, **kw) for l in s.strip().split('\n') if l.strip() and not l.strip().startswith(';')]

def icost(i):
    k = i.kind
    if k in ('valu',): return 8 if i.mn.startswith('v_permlane') else 4
    if k == 'trans': return 8
    if k == 'ldsr': return 8
    if k == 'ldsw': return 12
    if k in ('dma', 'vload', 'vstore'): return 12
    if k == 'label': return 0
    if k == 'bar': return 8
    return 4
def isv(i): return i.kind in ('valu', 'trans')
def cls(item):
    v = [isv(i) for i in item]
    return 'V' if all(v) else ('N' if not any(v) else 'M')
def gap_order(items):
    return [i for c in 'NMV' for it in items if cls(it) == c for i in it]
def gap_time(items):
    t = 4; pv = False
    for i in gap_order(items):
        if isv(i): t = max(t, 8)
        elif pv and i.kind in ('ldsr', 'ldsw', 'dma', 'vload', 'vstore'): t += 4
        t += icost(i); pv = isv(i)
    return t

class Body:
    def __init__(self, backbone):
        self.bb = backbone
        self.n = len(backbone)
        self.gaps = [[] for _ in range(self.n)]
    def put(self, g, item, front=False):
        if isinstance(item, I): item = [item]
        w = g // self.n
        for ins in item:
            ins.tag = ins.tag - w
            ins.meta['gap'] = g % self.n
        if front: self.gaps[g % self.n].insert(0, item)
        else: self.gaps[g % self.n].append(item)
        return g
    def delta(self, g, item):
        its = self.gaps[g % self.n]
        return max(16, gap_time(its + [item])) - max(16, gap_time(its))
    def fit(self, lo, hi, item, late=False, allow=None, tight=False):
        if isinstance(item, I): item = [item]
        rng = [g for g in range(lo, max(lo, hi) + 1) if allow is None or (g % self.n) in allow]
        assert rng, (lo, hi, item)
        if late: rng.reverse()
        if tight:
            best = min(rng, key=lambda g: (self.delta(g, item), -gap_time(self.gaps[g % self.n])))
        else:
            best = min(rng, key=lambda g: self.delta(g, item))
        return self.put(best, item)
    def chain(self, items, lo, hi, prev=None, allow=None):
        g = lo; n = len(items)
        for k, it in enumerate(items):
            if isinstance(it, I): it = [it]
            if prev is not None and 'NMV'.index(cls(it)) < 'NMV'.index(prev): g += 1
            elif prev == 'M' and cls(it) == 'M': pass
            h = max(g, lo + ((k + 1) * (hi - lo + 1)) // n - 1)
            if allow is not None:
                while not any((x % self.n) in allow for x in range(g, h + 1)): h += 1
            g = self.fit(g, h, it, allow=allow)
            prev = cls(it)
        return g
    def lin(self, a=0, b=None):
        out = []
        for i in range(a, self.n if b is None else b):
            out.append(self.bb[i])
            out.extend(gap_order(self.gaps[i]))
        return out
    def over(self):
        return sum(max(16, gap_time(g)) - 16 for g in self.gaps)

class Block:
    def __init__(self, ins, loop=1, label=None, cnt=None, exit_at=None, name=''):
        self.ins = ins; self.loop = loop; self.label = label; self.cnt = cnt; self.exit_at = exit_at; self.name = name
        self.loop_is = label is not None

class Program:
    def __init__(self, name):
        self.name = name
        self.blocks = []
        self.ool = []
    def straight(self, ins, name=''):
        self.blocks.append(Block(list(ins), name=name))
    def loop(self, ins, count, label, name=''):
        self.blocks.append(Block(list(ins), loop=count, label=label, name=name))
    def trace(self):
        for b in self.blocks:
            for it in range(b.loop):
                for ins in b.ins:
                    yield ins, it, b
                    if ins.meta.get('exit_last') and it == b.loop - 1:
                        break

def analyze(prog, R):
    lds = []; vm = []
    ns = 0
    over_pos = {}
    nbar = 0
    last_read_bar = {}
    tr = list(prog.trace())
    ptr = {}
    reads_q = [None] * len(tr)
    for k, (ins, it, b) in enumerate(tr):
        for (p, v) in ins.meta.get('setptr', []): ptr[p] = v(ptr) if callable(v) else v
        for (p, d) in ins.meta.get('adv', []): ptr[p] = ptr.get(p, 0) + d
        if 'rq' in ins.meta:
            p, d = ins.meta['rq']
            junk = ins.meta.get('junk_last') and it == b.loop - 1 and b.loop_is
            reads_q[k] = None if junk else ptr[p] + d
    need = [None] * len(tr)
    cur = -1
    for k in range(len(tr) - 1, -1, -1):
        ins = tr[k][0]
        if reads_q[k] is not None: cur = max(cur, reads_q[k])
        if ins.kind == 'bar' and ins.meta.get('ring', True):
            need[k] = cur; cur = -1
    assert cur == -1, "reads before first barrier"
    def setmin(ins, attr, val):
        old = getattr(ins, attr)
        setattr(ins, attr, val if old is None else min(old, val))
    sites = []
    for k, (ins, it, b) in enumerate(tr):
        skip = ins.meta.get('active') is not None and not ins.meta['active'](it)
        regs = set(ins.rd) | set(ins.wr)
        idx = None
        for j, (o, w) in enumerate(lds):
            if w & regs: idx = j
        if ins.kind == 'bar' and ins.meta.get('drain_w'):
            for j, (o, w) in enumerate(lds):
                if o.meta.get('pub'): idx = j if idx is None else max(idx, j)
        if idx is not None:
            n = min(len(lds) - 1 - idx, 15)
            setmin(ins, 'w_lgkm', n)
            lds = lds[len(lds) - n:] if n else []
        idx = None
        for j, (o, w, q) in enumerate(vm):
            if w & regs: idx = j
            if ins.kind == 'bar' and need[k] is not None and q is not None and q <= need[k]: idx = j
        if ins.kind == 'bar' and need[k] is not None and need[k] >= 0:
            assert need[k] < ns, f"{prog.name}: barrier needs stage {need[k]} but only {ns} issued (block {b.name} it {it})"
        if idx is not None:
            n = min(len(vm) - 1 - idx, 63)
            setmin(ins, 'w_vm', n)
            vm = vm[len(vm) - n:] if n else []
        if ins.kind == 'wait':
            m = re.search(r'lgkmcnt\((\d+)\)', ins.text)
            if m:
                n = int(m.group(1)); lds = lds[len(lds) - n:] if n else []
            m = re.search(r'vmcnt\((\d+)\)', ins.text)
            if m:
                n = int(m.group(1)); vm = vm[len(vm) - n:] if n else []
        if ins.kind == 'bar': nbar += 1
        if reads_q[k] is not None: last_read_bar[reads_q[k]] = nbar
        if skip: continue
        if ins.kind in ('ldsr', 'ldsw'):
            lds.append((ins, set(ins.wr)))
        elif ins.kind == 'dma':
            st = ins.meta.get('st')
            if st == 'A':
                old = ns - R
                if old >= 0:
                    lb = last_read_bar.get(old)
                    if lb is not None:
                        assert nbar - lb >= 2, f"{prog.name}: ring WAR: stage {ns} overwrites {old} read {nbar-lb} barriers ago (block {b.name} it {it})"
                    over_pos[old] = k
                sites.append((ns, ins, it, b))
                vm.append((ins, set(), ns))
            elif st == 'B':
                vm.append((ins, set(), ns)); ns += 1
            else:
                vm.append((ins, set(), None))
        elif ins.kind in ('vload', 'vstore'):
            vm.append((ins, set(ins.wr), None))
    for k, q in enumerate(reads_q):
        if q is not None and q in over_pos:
            assert k < over_pos[q], f"{prog.name}: read of stage {q} after overwrite"
    prog.ns = ns
    prog.dma_sites = sites
    prog.maxq = max([q for q in reads_q if q is not None], default=-1)
    for b in prog.blocks:
        if b.loop_is:
            aw = [i for i in b.ins if i.kind not in ('bar', 'wph') and (i.w_lgkm is not None or i.w_vm is not None)]
            if aw and 'slow' not in prog.name: print("   auto waits in", prog.name, b.name, len(aw), aw[:3])
    return tr

def hazards(prog):
    tr = list(prog.trace())
    hist = []
    pos = 0
    total_nops = 0
    for k, (ins, it, b) in enumerate(tr):
        if ins.kind == 'label': continue
        if ins.kind == 'wph':
            if ins.w_lgkm is not None or ins.w_vm is not None: pos += 1
            continue
        extra = (1 if (ins.w_lgkm is not None or ins.w_vm is not None) else 0)
        p = pos + extra
        need = 0
        rd = set(ins.rd); wr = set(ins.wr)
        isv = ins.kind in ('valu', 'trans')
        for (o, op) in hist:
            dist = p - op - 1
            ow = set(o.wr)
            req = 0
            ov = o.kind in ('valu', 'trans')
            if ov and ins.kind == 'mfma' and ow & rd: req = max(req, 2)
            if o.kind == 'mfma':
                if ins.kind == 'mfma':
                    if ow & (set(ins.A) | set(ins.B)): req = max(req, 8)
                    if ow & set(ins.C) and list(o.wr) != list(ins.C): req = max(req, 6)
                elif ins.kind in ('valu', 'trans', 'ldsr', 'ldsw', 'vload', 'vstore', 'dma'):
                    if ow & (rd | wr): req = max(req, 8)
                    if isv and set(o.C) & wr: req = max(req, 3)
            if o.kind == 'trans' and ins.kind == 'valu' and ow & rd: req = max(req, 1)
            if ov and isv and ins.mn.startswith('v_permlane') and ow & rd: req = max(req, 2)
            if ov and isv and ins.dpp and ow & rd: req = max(req, 2)
            if ov and ins.mn.startswith('v_readfirstlane') and ow & rd: req = max(req, 1)
            if ov:
                sw = {r for r in ow if r[0] == 's' or r == 'vcc'}
                if sw & rd:
                    if isv: req = max(req, 2)
                    if ins.kind in ('vload', 'vstore', 'dma'): req = max(req, 5)
                    if ins.kind in ('salu', 'branch'): req = max(req, 1)
            if o.kind == 'salu' and 'm0' in ow and ins.kind == 'dma': req = max(req, 1)
            if o.kind == 'vstore' and 'x4' in o.mn and wr & set(o.rd): req = max(req, 2)
            if o.kind == 'ldsw' and 'b128' in o.mn and wr & set(o.rd): req = max(req, 2)
            if req > dist: need = max(need, req - dist)
        if need > ins.nop:
            ins.nop = need
        p += ins.nop
        if ins.kind == 'nop':
            p += int(ins.text.split()[1])
        hist.append((ins, p))
        if len(hist) > 12: hist.pop(0)
        pos = p + 1

def emit_ins(ins):
    out = list(ins.pre)
    if ins.kind == 'label':
        return out + [ins.text]
    if ins.nop:
        out.append(f"    s_nop {ins.nop - 1}")
    w = []
    if ins.w_vm is not None: w.append(f"vmcnt({ins.w_vm})")
    if ins.w_lgkm is not None: w.append(f"lgkmcnt({ins.w_lgkm})")
    if w: out.append("    s_waitcnt " + " ".join(w))
    if ins.kind != 'wph': out.append("    " + ins.text)
    return out

def emit(prog):
    out = []
    for b in prog.blocks:
        out.append(f"; ---- {prog.name}: {b.name} x{b.loop}")
        if b.label:
            out.append(".p2align 3")
            out.append(b.label + ":")
        for ins in b.ins:
            e = emit_ins(ins)
            if b.loop_is and 'slow' not in prog.name:
                if 'B' in MUT: e = [l for l in e if 's_barrier' not in l]
                if 'V' in MUT: e = [l for l in e if not ('s_waitcnt vmcnt' in l)]
                if 'D' in MUT: e = [l for l in e if not (' lds' in l and 'buffer_load' in l)]
                if 'L' in MUT: e = [l for l in e if not ('s_waitcnt lgkmcnt' in l)]
                if 'S' in MUT: e = [l for l in e if 'buffer_store' not in l]
                if 'U' in MUT: e = [l for l in e if not (l.strip().startswith('v_') and 'v_mfma' not in l)]
                if 'C' in MUT: e = [l for l in e if not (re.match(r's_(add|sub|min|mov|lshl|csel|set_gpr)', l.strip()) and 's25' not in l)]
                if 'W' in MUT: e = [l for l in e if 'ds_write' not in l]
                if 'R' in MUT: e = [l for l in e if 'ds_read' not in l]
            out.extend(e)
    return out
```

```python
from common import *
import struct

LDS_BYTES = 163840
SRDA, SRDB, SWS = 4, 8, 12
pOFF, pINC, pW2, pT1, pT2, pT3 = 16, 17, 18, 19, 20, 21
cPOS, cPREV, cT, CNT, sW, sC, sR2, sRB, sROLE, sIDX, sSTA, sSTB, sTMP = 22, 23, 24, 25, 26, 27, 28, 29, 30, 31, 32, 33, 34
sMSK = 36
PK, PV, PWQ, PWO, PW1, PW2, PWS = 40, 42, 44, 46, 48, 50, 52
sH0, sH3, sHB, sPS, sPY, hT0, hT1, hT2, sSCALE, sODD = 54, 55, 56, 57, 58, 59, 60, 61, 62, 63
sSL = 64
sPRIV = 70
sTO = 71; sTS = 72
vLANE, vDMA, vHT, vA0, vA1, vA2, vLPN, vLPI, vLPK, vL16, vXW, vXR = 0, 1, 2, 3, 4, 5, 6, 7, 8, 9, 10, 11
SCALE = struct.unpack('<I', struct.pack('<f', (128 ** -0.5) * 1.4426950408889634))[0]
STORE_FLAGS = os.environ.get("STFLAGS", "sc1")

def rg(p, i, n=4): return f"{p}[{i}:{i+n-1}]"
def R4(r): return rg(r[0], r[1], 4)
def R2(r, h): return rg(r[0], r[1] + 2*h, 2)
def mfma(d, a, b, c, **kw):
    cc = '0' if c is None else R4(c)
    return I(f"v_mfma_f32_16x16x32_bf16 {R4(d)}, {R4(a)}, {R4(b)}, {cc}", **kw)
def bar(**kw): return I("s_barrier", **kw)
def wph(*regs): return I("WPH " + ", ".join(regs))
U32 = lambda x: x & 0xffffffff

class Ctx:
    def __init__(self, name, R):
        self.p = Program(name)
        self.R = R; self.RING = R * 8192; self.AUX = self.RING
        self.segs = []; self.pos = 0; self.nlab = 0
    def lab(self, s):
        self.nlab += 1
        return f"{self.p.name}_{s}{self.nlab}"
    def dma_items(self):
        A = I(f"buffer_load_dwordx4 v{vDMA}, s[{SRDA}:{SRDA+3}], s{pOFF} offen lds", st='A')
        B = I(f"buffer_load_dwordx4 v{vDMA}, s[{SRDB}:{SRDB+3}], s{pOFF} offen offset:1024 lds", st='B')
        a = Is(f"s_add_u32 s{pT1}, m0, 8192\ns_sub_u32 s{pT3}, s{pT1}, {self.RING}\ns_min_u32 m0, s{pT1}, s{pT3}")
        b = Is(f"s_add_u32 s{pOFF}, s{pOFF}, s{pINC}\ns_add_u32 s{pT2}, s{pOFF}, s{pW2}\ns_min_u32 s{pOFF}, s{pOFF}, s{pT2}")
        return A, B, a, b
    def dma_flat(self):
        A, B, a, b = self.dma_items()
        return [A, B] + a + b
    def place_dma_big(self, body, n, lo=0, hi=None, sep=4):
        if hi is None: hi = body.n - 1
        span = hi - lo + 1
        out = []
        for k in range(n):
            a0 = lo + (k * span) // n; b0 = lo + ((k + 1) * span) // n - 1
            A, B, a, b = self.dma_items()
            ga = body.fit(a0, a0 + 3, A)
            gb = body.fit(ga + min(sep, 1 + (b0 - a0)//4), ga + sep + 2, B)
            out.append((ga, gb, b0, a, b))
        return out
    def place_dma_small(self, body, plc):
        free = set()
        for (ga, gb, b0, a, b) in plc:
            g1 = body.fit(gb + 1, min(gb + 2, b0), a[0])
            g3 = body.fit(max(g1, b0 - 1), b0, a[2], late=True)
            if g3 > g1: body.fit(g1, g3 - 1, a[1])
            else:
                it = body.gaps[g3 % body.n]; it.insert(len(it) - 1, [a[1]]); a[1].meta['gap'] = g3
            body.chain(b, gb + 1, b0)
            free |= set(range(g1 + 1, g3))
        return free
    def seg(self, n, ptr=None, ptrB=None, size=0, stride=0, perm=False, base='', delta=0, params=None):
        start = self.pos; self.pos += n
        t = []
        if ptr is None:
            t.append(f"s_mov_b32 s{SRDA+2}, 0\ns_mov_b32 s{SRDB+2}, 0\ns_mov_b32 s{pOFF}, 0\ns_mov_b32 s{pINC}, 0\ns_mov_b32 s{pW2}, 0")
            self.segs.append((n, "\n".join(t)))
            return start
        if ptrB is None: ptrB = ptr
        t.append(base)
        t.append(f"s_add_u32 s{SRDA}, s{ptr}, s{hT0}\ns_addc_u32 s{SRDA+1}, s{ptr+1}, 0\ns_sub_u32 s{SRDA+2}, {size}, s{hT0}")
        t.append(f"s_add_u32 s{SRDB}, s{ptrB}, s{hT0}\ns_addc_u32 s{SRDB+1}, s{ptrB+1}, 0")
        d = delta - 1024
        if d >= 0: t.append(f"s_add_u32 s{SRDB}, s{SRDB}, {d}\ns_addc_u32 s{SRDB+1}, s{SRDB+1}, 0\ns_sub_u32 s{SRDB+2}, s{SRDA+2}, {d}")
        else: t.append(f"s_sub_u32 s{SRDB}, s{SRDB}, {-d}\ns_subb_u32 s{SRDB+1}, s{SRDB+1}, 0\ns_add_u32 s{SRDB+2}, s{SRDA+2}, {-d}")
        if isinstance(params, str): t.append(params)
        else:
            for reg, val in zip((pOFF, pINC, pW2), params): t.append(f"s_mov_b32 s{reg}, {U32(val)}")
        if perm:
            t.append(f"v_lshrrev_b32 v{vHT}, 4, v{vLANE}\nv_lshlrev_b32 v{vHT}, 3, v{vHT}\nv_bfe_u32 v{vDMA}, v{vLANE}, 2, 2\nv_add_u32 v{vHT}, v{vHT}, v{vDMA}")
        else:
            t.append(f"v_lshrrev_b32 v{vHT}, 2, v{vLANE}")
        t.append(f"v_mul_u32_u24 v{vHT}, {stride}, v{vHT}")
        t.append(f"v_lshrrev_b32 v{vDMA}, 4, v{vLANE}\nv_sub_u32 v{vDMA}, 0, v{vDMA}\nv_xor_b32 v{vDMA}, v{vDMA}, v{vLANE}\nv_and_b32 v{vDMA}, 3, v{vDMA}\nv_lshl_add_u32 v{vDMA}, v{vDMA}, 4, v{vHT}")
        self.segs.append((n, "\n".join(t)))
        return start
    def finish(self):
        p = self.p
        analyze(p, self.R)
        total = sum(n for n, _ in self.segs[:-1])
        assert p.maxq + 1 == total, (p.name, p.maxq + 1, total)
        starts = {}; q = 0
        for n, txt in self.segs:
            starts[q] = txt; q += n
        for (qi, ins, it, b) in p.dma_sites:
            if qi in starts:
                txt = ["    " + l.strip() for l in starts[qi].split("\n") if l.strip()]
                if b.loop_is:
                    l = self.lab("SW")
                    ins.pre += [f"    s_cmp_eq_u32 s{CNT}, {b.loop - it}", f"    s_cbranch_scc1 {l}", f"{l}r:"]
                    p.ool += [f"{l}:"] + txt + [f"    s_branch {l}r"]
                else:
                    ins.pre += txt
        hazards(p)
        return emit(p) + p.ool
    def stamp(self):
        if not STAMP: return
        k = getattr(self, 'nst', 0); self.nst = k + 1
        assert k < 12
        self.p.straight(Is(f"{'s_memtime' if STAMP == 2 else 's_memrealtime'} s[82:83]\ns_waitcnt lgkmcnt(0)\ns_mov_b32 s{84+k}, s82"), name="stamp")
    def end(self):
        t = ""
        if STAMP:
            self.stamp()
            t += f"s_lshl_b32 s82, s2, 8\ns_lshl_b32 s83, s{sW}, 6\ns_add_u32 s82, s82, s83\ns_add_u32 s82, s82, {DBG_OFF + 65536}\nv_mov_b32 v12, 0\ns_mov_b64 exec, 1\n"
            for k in range(self.nst):
                t += f"v_mov_b32 v13, s{84+k}\nbuffer_store_dword v13, v12, s[{SWS}:{SWS+3}], s82 offen offset:{4*k}\n"
        t += "s_endpgm"
        self.p.straight(Is(t), name="end")
    def adv(self, step=8192):
        return Is(f"s_add_u32 s{cPOS}, s{cPOS}, {step}\ns_sub_u32 s{cT}, s{cPOS}, {self.RING}\ns_min_u32 s{cPOS}, s{cPOS}, s{cT}")
    def setpos(self, start, back, shift):
        pos = ((start - back) % self.R) * 8192
        if shift is None: ins = Is(f"s_mov_b32 s{cPOS}, {pos}")
        else: ins = Is(f"s_lshl_b32 s{cPOS}, s{sC}, {shift}\ns_add_u32 s{cPOS}, s{cPOS}, {pos}")
        ins[-1].meta['setptr'] = [('c', start - back), ('d', start - back)]
        return ins
    def loop_end(self, label):
        return Is(f"s_sub_u32 s{CNT}, s{CNT}, 1\ns_cmp_lg_u32 s{CNT}, 0\ns_cbranch_scc1 {label}")
    def add_loop(self, body, count, name, pre=None, exit_gap=None):
        label = self.lab(name)
        lin = body.lin()
        pr = []
        for i in lin:
            if i.tag == 1:
                c = i.clone(); c.meta.pop('junk_last', None); pr.append(c)
        self.p.straight((pre or []) + pr + [I(f"s_mov_b32 s{CNT}, {count}")], name=name + " prologue")
        print(f"{self.p.name} {name}: n={body.n} over={body.over()} ({100*body.over()/(16*body.n):.1f}%)")
        if exit_gap is None:
            ep = [i.clone() for i in lin if i.tag == -1]
            self.p.loop(lin + self.loop_end(label), count, label, name=name)
            return ep
        lexit = self.lab(name + "x")
        ex = Is(f"s_cmp_eq_u32 s{CNT}, 1\ns_cbranch_scc1 {lexit}")
        ex[1].meta['exit_last'] = True
        l0 = body.lin(0, exit_gap + 1); l1 = body.lin(exit_gap + 1)
        rest = [i.clone() for i in l1]
        self.p.loop(l0 + ex + l1 + Is(f"s_sub_u32 s{CNT}, s{CNT}, 1\ns_branch {label}"), count, label, name=name)
        return [I(f"{lexit}:")] + rest

TSL = [(72, 71), (76, 80)]
def touch_lin(slot, vT, vJ, basecode, nbytes, nit, nw=64):
    S, O = TSL[slot]
    lines = -(-nbytes // 128)
    per = -(-lines // (nw * nit))
    g = 1
    while g < per: g *= 2
    assert g <= 64
    sh = {64: 0, 32: 1, 16: 2, 8: 3, 4: 4, 2: 5, 1: 6}[g]
    t = basecode + f"""
s_mov_b32 s{S}, s{hT0}
s_mov_b32 s{S+1}, s{hT1}
s_mov_b32 s{S+2}, {nbytes}
s_mov_b32 s{S+3}, 0x00020000
s_mul_i32 s{O}, s{hT2}, {g*128}
v_lshrrev_b32 v{vT}, {sh}, v{vLANE}
v_lshlrev_b32 v{vT}, 7, v{vT}"""
    items = lambda: [I(f"buffer_load_dword v{vJ}, v{vT}, s[{S}:{S+3}], s{O} offen", wr=[]), I(f"s_add_u32 s{O}, s{O}, {nw*g*128}")]
    return Is(t), items
GW = f"s_lshl_b32 s{hT2}, s{sRB}, 2\ns_add_u32 s{hT2}, s{hT2}, s{sW}\n"
def tb_rows(ptr, rowcode):
    return rowcode + f"\ns_mul_i32 s{hT0}, s{hT0}, 1152\ns_add_u32 s{hT0}, s{ptr}, s{hT0}\ns_addc_u32 s{hT1}, s{ptr+1}, 0\n" + GW
def tb_kv(shead):
    return f"""s_lshr_b32 s{hT2}, s{shead}, 1
s_lshl_b32 s{hT2}, s{hT2}, 19
s_add_u32 s{hT2}, s{hT2}, {1536*256}
s_cmp_eq_u32 s{sC}, 0
s_cselect_b32 s{hT0}, s{PK}, s{PV}
s_cselect_b32 s{hT1}, s{PK+1}, s{PV+1}
s_add_u32 s{hT0}, s{hT0}, s{hT2}
s_addc_u32 s{hT1}, s{hT1}, 0
s_lshl_b32 s{hT2}, s{sRB}, 1
s_add_u32 s{hT2}, s{hT2}, s{sR2}
"""
def touch_w1(slot, vT, vJ, first):
    S, O = TSL[slot]
    t = GW + f"""s_mov_b32 s{S}, s{PW1}
s_mov_b32 s{S+1}, s{PW1+1}
s_mov_b32 s{S+2}, {SZ['w1']}
s_mov_b32 s{S+3}, 0x00020000
s_mul_i32 s{O}, s{hT2}, {9*9216}
s_lshl_b32 s{hT0}, s{sHB}, 1
s_add_u32 s{O}, s{O}, s{hT0}
s_add_u32 s{O}, s{O}, {first*128}
v_lshrrev_b32 v{vT}, 2, v{vLANE}
v_min_u32 v{vT}, 8, v{vT}
v_mul_u32_u24 v{vT}, 9216, v{vT}"""
    items = lambda: [I(f"buffer_load_dword v{vJ}, v{vT}, s[{S}:{S+3}], s{O} offen", wr=[]), I(f"s_add_u32 s{O}, s{O}, 128")]
    return Is(t), items
def place_touch(body, touches, lo, hi):
    pre = []
    for k, (p, items) in enumerate(touches or []):
        a = lo + k*(hi - lo)//len(touches); b = lo + (k + 1)*(hi - lo)//len(touches) - 1
        body.chain(items(), a, b)
        pre += p
    return pre

def place_reads(body, frags, NS):
    F = len(frags); n = body.n
    assert F % NS == 0, (F, NS)
    g = None
    for k in list(range(F)):
        fr = frags[k]; prev = frags[(k - NS) % F]
        e = prev['u'] + prev['n'] - 1 - (n if k < NS else 0)
        fr['rg'] = []
        for r in fr['reads']:
            gg = e if g is None else max(e, g + 1)
            gg = min(gg, max(e, fr['u'] - 6))
            if g is not None: gg = max(gg, g)
            fr['rg'].append(gg); g = gg
    allr = [(gg % n, 0 if gg >= 0 else 1, k, j) for k, fr in enumerate(frags) for j, gg in enumerate(fr['rg'])]
    for (_, _, k, j) in sorted(allr):
        r = frags[k]['reads'][j]; gg = frags[k]['rg'][j]
        if gg < 0: r.meta['junk_last'] = True
        body.put(gg, r)

def place_stage_ops(body, frags, wait_every=2):
    F = len(frags); n = body.n
    st = [k for k in range(F) if frags[k].get('stage')]
    for k in st:
        s = frags[k]['stage']
        regs = set(sum([i.wr for i in s['addr']], []))
        lo = None
        for d in range(1, F + 1):
            fr = frags[(k - d) % F]
            if any(set(r.rd) & regs for r in fr['reads']):
                lo = fr['rg'][-1] - (n if k - d < 0 else 0); break
        hi = frags[k]['rg'][0] - 1
        lo = max(lo, hi - 6)
        if 'after' in s: lo = max(lo, frags[s['after']]['stage']['g0'])
        assert lo <= hi, (k, lo, hi)
        g = lo
        for i in s['addr']:
            g = body.fit(g, hi, i)
            s.setdefault('g0', g)
        if s.get('bar') is not None:
            body.fit(max(lo, hi - 3), hi, s['bar'], late=True)
    for idx, k in enumerate(st):
        s = frags[k]['stage']
        if not s.get('sal'): continue
        regs = set(sum([i.wr for i in s['sal']], [])) - {'scc'}
        pg = None
        for d in range(1, len(st) + 1):
            ps = frags[st[(idx - d) % len(st)]]['stage']
            if any(set(i.rd) & regs for i in ps['addr']):
                pg = ps['g0'] - (n if idx - d < 0 else 0); break
        body.chain(s['sal'], max(pg + 1, s['g0'] - 12), s['g0'])
    k = 0
    while k < F:
        grp = frags[k:k + wait_every]
        regs = []
        for fr in grp:
            if fr['rg'][-1] < frags[k]['u'] - 4 or fr is frags[k]:
                regs += sum([r.wr for r in fr['reads']], [])
            else:
                grp = grp[:grp.index(fr)]; break
        w = wph(*regs); w.meta['w'] = frags[k].get('w')
        u = frags[k]['u']
        body.fit(max(u - 2, frags[k]['rg'][-1]), u - 1, w, late=True)
        k += len(grp)

def prologue(ctx, role_code):
    t = f"""
v_and_b32 v{vLANE}, 63, v0
v_lshlrev_b32 v{vL16}, 4, v{vLANE}
v_lshrrev_b32 v{vHT}, 4, v{vLANE}
v_sub_u32 v{vHT}, 0, v{vHT}
v_and_b32 v{vHT}, 3, v{vHT}
v_lshrrev_b32 v{vA0}, 2, v{vLANE}
v_lshlrev_b32 v{vA0}, 6, v{vA0}
v_bfe_u32 v{vA1}, v{vLANE}, 1, 1
v_xor_b32 v{vA1}, v{vA1}, v{vHT}
v_lshl_add_u32 v{vLPN}, v{vA1}, 4, v{vA0}
v_and_b32 v{vA1}, 1, v{vLANE}
v_lshl_add_u32 v{vLPN}, v{vA1}, 3, v{vLPN}
v_and_b32 v{vA1}, 3, v{vLANE}
v_xor_b32 v{vA1}, v{vA1}, v{vHT}
v_lshl_add_u32 v{vLPI}, v{vA1}, 4, v{vA0}
v_bfe_u32 v{vA0}, v{vLANE}, 2, 2
v_sub_u32 v{vA0}, 0, v{vA0}
v_lshrrev_b32 v{vA1}, 4, v{vLANE}
v_xor_b32 v{vA0}, v{vA0}, v{vA1}
v_and_b32 v{vA0}, 3, v{vA0}
v_and_b32 v{vA1}, 15, v{vLANE}
v_lshlrev_b32 v{vA1}, 6, v{vA1}
v_lshl_add_u32 v{vLPK}, v{vA0}, 4, v{vA1}
s_lshl_b32 m0, s{sW}, 11
s_mov_b32 s{sSCALE}, {SCALE}
""" + role_code
    ctx.p.straight(Is(t), name="prologue")

def xn_reg(m, rt, j):
    f = rt * 18 + j
    return ('a', 4*f) if f < 64 else ('v', m['xnv'] + 4*(f - 64))

def phase_X(ctx, m, L):
    st0 = ctx.seg(18, PWS, None, SZ['x'], 1152, False,
                  f"s_lshl_b32 s{hT0}, s{sRB}, 7\ns_lshl_b32 s{hT1}, s{sW}, 4\ns_add_u32 s{hT0}, s{hT0}, s{hT1}\ns_mul_i32 s{hT0}, s{hT0}, 1152",
                  64*1152, (0, 64, 0))
    ins = []
    for k in range(L): ins += ctx.dma_flat()
    T = m['xtmp']
    ins += Is(f"""s_lshl_b32 s{sTMP}, s{sC}, 12
s_lshl_b32 s{cT}, s{sR2}, 10
s_add_u32 s{sTMP}, s{sTMP}, s{cT}
v_xor_b32 v{vA0}, s{sTMP}, v{vLPK}
v_xor_b32 v{vA1}, 4096, v{vA0}
v_add_u32 v{T}, 0xc000, v{vA0}
v_add_u32 v{T+1}, 0xc000, v{vA1}""")
    ins[-1].meta['setptr'] = [('c', 0)]
    for j in range(18):
        if j % 2 == 0: ins.append(bar())
        pos = (j % ctx.R) * 8192
        for rt in range(4):
            hi = pos >= 0xc000
            a = (T + (rt >> 1)) if hi else (vA0 if rt < 2 else vA1)
            ins.append(I(f"ds_read_b128 {R4(xn_reg(m, rt, j))}, v{a} offset:{pos - (0xc000 if hi else 0) + (rt & 1)*2048}", rq=('c', j)))
        ins += ctx.dma_flat()
    ctx.p.straight(ins, name="X")

def gemm1_body(ctx, m, nrt, tile_off, lp, NS, bar_every=2):
    stg = m['stg']; acc = m['acc1']; nt = len(tile_off)
    bb = []; frags = []
    for j in range(18):
        for t in range(nt):
            f = j*nt + t
            st = (stg[0], stg[1] + 4*(f % NS)); u = len(bb)
            for rt in range(nrt):
                d = ('v', acc + 4*(t*nrt + rt))
                bb.append(mfma(d, st, xn_reg(m, rt, j), None if j == 0 else d))
            kk = j & 1
            reads = [I(f"ds_read_b64_tr_b16 {R2(st, h)}, v{vA0} offset:{(2*kk + h)*2048 + tile_off[t]}", rq=('c', 0)) for h in range(2)]
            fr = dict(u=u, n=nrt, reads=reads)
            if kk == 0 and t == 0:
                ad = Is(f"v_xor_b32 v{vA0}, s{cPOS}, v{lp}"); ad[0].meta['adv'] = [('c', 1)]
                fr['stage'] = dict(addr=ad, sal=ctx.adv(), bar=bar() if (j // 2) % bar_every == 0 else None)
            frags.append(fr)
    body = Body(bb)
    place_reads(body, frags, NS)
    return body, frags

def idxgrp(ins, allregs):
    for i in ins: i.wr = allregs
    return [I(f"s_set_gpr_idx_on s{sIDX}, gpr_idx(DST)")] + ins + [I("s_set_gpr_idx_off")]

def phase_F1(ctx, m, nk, nstash, touch=None):
    st0 = ctx.seg(9*nk, PW1, None, SZ['w1'], 9216, True,
                  f"s_lshl_b32 s{hT0}, s{sR2}, 5\ns_lshl_b32 s{hT1}, s{sC}, 2\ns_add_u32 s{hT0}, s{hT0}, s{hT1}\ns_mul_i32 s{hT0}, s{hT0}, 9216\ns_lshl_b32 s{hT1}, s{sHB}, 1\ns_add_u32 s{hT0}, s{hT0}, s{hT1}",
                  64, (0, 64*9216, -(9*64*9216 - 128)))
    body, frags = gemm1_body(ctx, m, 4, [0, 1024], vLPN, m['NS'])
    acc = m['acc1']; tmp = m['tmp']; n = body.n
    allrd = nstash == nk
    for k in range(8):
        t, rt = k >> 2, k & 3
        a = acc + 4*k
        for h in range(2):
            body.fit(n - 8 + k + 4, n + k - 1, I(f"v_cvt_pk_bf16_f32 v{tmp+4*rt+2*t+h}, v{a+2*h}, v{a+2*h+1}"))
    plc = ctx.place_dma_big(body, 9, lo=10, hi=n - 6)
    tpre = place_touch(body, touch, 70, 130)
    place_stage_ops(body, frags)
    free = ctx.place_dma_small(body, plc)
    if allrd:
        items = []
        for rt in range(4):
            items += [I(f"v_pk_max_i16 v{tmp+4*rt+e}, v{tmp+4*rt+e}, 0") for e in range(4)]
            a = vXW if rt < 2 else vXR
            items.append(I(f"ds_write_b128 v{a}, v[{tmp+4*rt}:{tmp+4*rt+3}] offset:{(rt & 1)*1024}", pub=True))
        items += Is(f"v_add_u32 v{vXW}, -4096, v{vXW}\nv_add_u32 v{vXR}, -4096, v{vXR}")
        body.chain(items, n + 8, n + 120)
        pre = Is(f"""s_mul_i32 s{sTMP}, s{sW}, {nk*4096}
s_lshl_b32 s{cT}, s{sC}, 11
s_add_u32 s{sTMP}, s{sTMP}, s{cT}
s_add_u32 s{sTMP}, s{sTMP}, {ctx.AUX + nk*4096}
v_add_u32 v{vXW}, s{sTMP}, v{vL16}
v_xor_b32 v{vXR}, 2048, v{vXW}""")
    else:
        H = m['H']; nH = m['nH']
        Hall = [f"v{H+i}" for i in range(nH*16)]
        items = []
        for rt in range(4):
            for e in range(0, 4, 2):
                items.append(idxgrp(Is(f"v_pk_max_i16 v{H+4*rt+e}, v{tmp+4*rt+e}, 0\nv_pk_max_i16 v{H+4*rt+e+1}, v{tmp+4*rt+e+1}, 0"), Hall))
        g = body.chain(items, n + 8, n + 70, allow=free)
        last = H + (nH - 1)*16
        items = []
        for rt in range(4):
            items.append([I(f"s_mov_b64 exec, s[{sMSK}:{sMSK+1}]"), I(f"ds_write_b128 v{vA2}, v[{last+4*rt}:{last+4*rt+3}] offset:{rt*1024}", active=(lambda it: 1 <= it <= nstash)), I("s_mov_b64 exec, -1")])
        items.append(I(f"v_add_u32 v{vA2}, 4096, v{vA2}"))
        items += Is(f"s_sub_u32 s{sTMP}, {nk - nstash}, s{CNT}\ns_lshl_b32 s{sTMP}, s{sTMP}, 4")
        items.append(Is(f"s_cmp_gt_u32 s{CNT}, {nk - nstash}\ns_cselect_b32 s{sIDX}, {(nH-1)*16}, s{sTMP}\ns_cselect_b64 s[{sMSK}:{sMSK+1}], -1, 0"))
        g = body.chain(items, g + 1, n + 130, prev='M')
        assert g < 2*n - 8
        pre = Is(f"s_mov_b32 s{sIDX}, {(nH-1)*16}\ns_mov_b64 s[{sMSK}:{sMSK+1}], 0\ns_lshl_b32 s{sTMP}, s{sW}, 14\ns_add_u32 s{sTMP}, s{sTMP}, {ctx.AUX - 4096}\nv_add_u32 v{vA2}, s{sTMP}, v{vL16}")
    pre = pre + tpre
    ep = ctx.add_loop(body, nk, "F1", pre=pre + ctx.setpos(st0, 1, 5))
    if allrd:
        ep = [e for e in ep if e.kind in ('valu', 'ldsw') and not e.text.startswith('v_add_u32')]
        for e in ep: e.meta.pop('active', None)
    else:
        ep = [e for e in ep if (e.kind == 'valu' and not e.text.startswith('v_add_u32')) or e.mn.startswith('s_set_gpr')]
        ep = Is(f"s_mov_b32 s{sTMP}, m0") + ep + Is(f"s_mov_b32 m0, s{sTMP}")
    ctx.p.straight(ep, name="F1 epilogue")

def part_base(spart, extra=""):
    return Is(f"s_mul_i32 s{sSTA}, s{sRB}, {NP*PSZ}\ns_mul_i32 s{sTMP}, s{spart}, {PSZ}\ns_add_u32 s{sSTA}, s{sSTA}, s{sTMP}\ns_add_u32 s{sSTA}, s{sSTA}, {PART_OFF}\n" + extra)

def g2seg(ctx, ptr, size, nst, rowcode, params=None):
    A = 64*1152
    return ctx.seg(9*nst, ptr, None, size, 1152, False,
                   rowcode + f"\ns_lshl_b32 s{hT1}, s{sW}, 4\ns_add_u32 s{hT0}, s{hT0}, s{hT1}\ns_mul_i32 s{hT0}, s{hT0}, 1152",
                   64, params or (0, A, -(nst*A - 128)))

def phase_G2n(ctx, m, st0, nst, Bf, blocks, spart, name, NS, pre=None, bar_every=2, touch=None):
    stg = m['stg2']; acc = m['acc2'][0]; pk = m['pk']
    bb = []; frags = []; f = 0
    for s in range(nst):
        for kk in range(2):
            for t in range(2):
                st = (stg[0], stg[1] + 4*(f % NS)); u = len(bb)
                for rt in range(4):
                    d = ('v', acc + 16*t + 4*rt)
                    bb.append(mfma(d, st, Bf(2*s + kk, rt), None if (s == 0 and kk == 0) else d))
                a = vA0 if t == 0 else vA1
                reads = [I(f"ds_read_b64_tr_b16 {R2(st, h)}, v{a} offset:{blocks(kk)[h]*2048}", rq=('cd'[t], 0)) for h in range(2)]
                fr = dict(u=u, n=4, reads=reads)
                if kk == 0 and t == 0:
                    ad = Is(f"v_xor_b32 v{vA0}, s{cPOS}, v{vLPN}"); ad[0].meta['adv'] = [('c', 1)]
                    fr['stage'] = dict(addr=ad, sal=ctx.adv(), bar=bar() if s % bar_every == 0 else None)
                if kk == 0 and t == 1:
                    fr['stage'] = dict(addr=[I(f"v_xor_b32 v{vA1}, 32, v{vA0}", adv=[('d', 1)])], after=len(frags) - 1)
                frags.append(fr); f += 1
    body = Body(bb); n = body.n
    place_reads(body, frags, NS)
    for k in range(8):
        t, rt = k >> 2, k & 3
        a = acc + 4*k
        for h in range(2):
            body.fit(n - 8 + k + 4, n + k - 1, I(f"v_cvt_pk_bf16_f32 v{pk+4*rt+2*t+h}, v{a+2*h}, v{a+2*h+1}"))
    plc = ctx.place_dma_big(body, nst, lo=8, hi=n - 5)
    items = [I(f"buffer_store_dwordx4 v[{pk+4*rt}:{pk+4*rt+3}], v{vL16}, s[{SWS}:{SWS+3}], s{sSTB} offen offset:{rt*1024} {STORE_FLAGS}") for rt in range(4)]
    g = body.chain(items, n + 8, n + min(n - 12, 48))
    pre = (pre or []) + place_touch(body, touch, 50, n - 6)
    place_stage_ops(body, frags)
    ctx.place_dma_small(body, plc)
    body.chain(Is(f"s_mov_b32 s{sSTB}, s{sSTA}\ns_add_u32 s{sSTA}, s{sSTA}, 16384"), g + 1, g + 6)
    pre = (pre or []) + part_base(spart, f"s_lshl_b32 s{sTMP}, s{sC}, 13\ns_add_u32 s{sSTA}, s{sSTA}, s{sTMP}\ns_lshl_b32 s{sTMP}, s{sR2}, 12\ns_add_u32 s{sSTA}, s{sSTA}, s{sTMP}\ns_mov_b32 s{sSTB}, 0xf0000000")
    ep = ctx.add_loop(body, 9, name, pre=pre + ctx.setpos(st0, 1, 10))
    ctx.p.straight([e for e in ep if e.kind in ('valu', 'vstore')], name=name + " epilogue")

def phase_G2x(ctx, m, st0, nk, Bf, spart, name, NS, pre=None, bar_every=2):
    stg = m['stg2']; own = m['acc2']; frn = m['accf']; rcv = m['rcv']; pk = m['pk']
    acc = lambda pp, t, rt: ('v', own[pp] + 8*t + 4*rt) if rt < 2 else ('a', frn[pp] + 8*t + 4*(rt - 2))
    bb = []; frags = []; f = 0
    for pp in range(2):
        for s in range(nk):
            for t in range(4):
                st = (stg[0], stg[1] + 4*(f % NS)); u = len(bb)
                for rt in range(4):
                    d = acc(pp, t, rt)
                    bb.append(mfma(d, st, Bf(s, rt), None if s == 0 else d, w='g', pp=pp))
                a = vA0 if t % 2 == 0 else vA1
                reads = [I(f"ds_read_b64_tr_b16 {R2(st, h)}, v{a} offset:{h*4096 + (t >> 1)*1024}", rq=('cd'[t % 2], 0), w='g', pp=pp) for h in range(2)]
                fr = dict(u=u, n=4, reads=reads, w='g')
                if t == 0:
                    ad = Is(f"v_xor_b32 v{vA0}, s{cPOS}, v{vLPN}"); ad[0].meta['adv'] = [('c', 1)]
                    fr['stage'] = dict(addr=ad, sal=ctx.adv(), bar=bar() if (pp*nk + s) % bar_every == 0 else None)
                if t == 1:
                    fr['stage'] = dict(addr=[I(f"v_xor_b32 v{vA1}, 32, v{vA0}", adv=[('d', 1)])], after=len(frags) - 1)
                frags.append(fr); f += 1
    body = Body(bb); n = body.n; hn = n // 2
    place_reads(body, frags, NS)
    plc = ctx.place_dma_big(body, nk, lo=0, hi=hn - 1) + ctx.place_dma_big(body, nk, lo=hn, hi=n - 1)
    place_stage_ops(body, frags)
    bars = [g for g in range(n) if any(i.kind == 'bar' for it in body.gaps[g] for i in it)]
    bars = bars + [b + n for b in bars]
    for pp in range(2):
        e = hn*(pp + 1)
        ws = [I(f"ds_write_b128 v{vXW}, {R4(acc(pp, k >> 1, 2 + (k & 1)))} offset:{pp*8192 + k*1024}", pub=True, x=pp) for k in range(8)]
        g = body.chain(ws, e + 2, e + 50)
        nb = min(b for b in bars if b >= g + 5)
        for it in body.gaps[nb % n]:
            for i in it:
                if i.kind == 'bar': i.meta['drain_w'] = True
        st = sSTA if pp == 0 else sSTB
        g = nb + 1
        span = (e + hn - 4 - g) // 2
        for half in range(2):
            rs = [I(f"ds_read_b128 v[{rcv+4*k}:{rcv+4*k+3}], v{vXR} offset:{pp*8192 + (half*4 + k)*1024}", x=pp) for k in range(4)]
            g1 = body.chain(rs, g, g + 14)
            w = wph(*[f"v{rcv+i}" for i in range(16)]); w.meta['x'] = pp
            g1 = body.fit(g1 + 6, g1 + 9, w)
            ops = []
            for rt in range(2):
                for t in range(2):
                    a = acc(pp, half*2 + t, rt)[1]; k = t*2 + rt
                    ops += [I(f"v_add_f32 v{a+h}, v{a+h}, v{rcv+4*k+h}", x=pp) for h in range(4)]
                    ops += [I(f"v_cvt_pk_bf16_f32 v{pk+4*rt+2*t+h}, v{a+2*h}, v{a+2*h+1}", x=pp) for h in range(2)]
                ops.append(I(f"buffer_store_dwordx4 v[{pk+4*rt}:{pk+4*rt+3}], v{m['vst'][half]}, s[{SWS}:{SWS+3}], s{st} offen offset:{rt*1024} {STORE_FLAGS}", x=pp))
            g = body.chain(ops, g1, g + span - 1, prev='N') + 1
        assert g < e + hn, (g, e + hn)
        if pp == 0:
            body.chain(Is(f"s_add_u32 s{sSTB}, s{sSTA}, 16384\ns_add_u32 s{sSTA}, s{sSTA}, 32768"), g, g + 2)
    ctx.place_dma_small(body, plc)
    for i in body.lin(0, hn):
        if i.kind == 'ldsr' and i.meta.get('pp') == 1: i.meta['junk_last'] = True
    pre = (pre or []) + part_base(spart, f"""s_lshl_b32 s{sTMP}, s{sW}, 11
s_add_u32 s{sSTA}, s{sSTA}, s{sTMP}
s_mov_b32 s{sSTB}, 0xf0000000
s_lshl_b32 s{sTMP}, s{sW}, 14
s_add_u32 s{sTMP}, s{sTMP}, {ctx.AUX}
v_add_u32 v{vXW}, s{sTMP}, v{vL16}
v_xor_b32 v{vXR}, 16384, v{vXW}
v_add_u32 v{m['vst'][1]}, 8192, v{vL16}""")
    rest = ctx.add_loop(body, 5, name, pre=pre + ctx.setpos(st0, 1, 11), exit_gap=hn - 1)
    out = [rest[0]]; done = False
    for e in rest[1:]:
        if e.meta.get('x') != 0: continue
        if e.kind == 'ldsr' and not done:
            out.append(bar(drain_w=True, ring=False)); done = True
        out.append(e)
    ctx.p.straight(out, name=name + " epilogue")
```

```python
from common import *

def ln_kernel():
    K = "ln_kernel"
    t = []
    a = t.append
    a(f"""
s_cmp_ge_u32 s2, 256
s_cbranch_scc1 LN_end
{"s_memrealtime s[16:17]" if STAMP else ""}
s_load_dwordx2 s[4:5], s[0:1], {KA['x']}
s_load_dwordx2 s[8:9], s[0:1], {KA['ws']}
s_load_dwordx2 s[24:25], s[0:1], {KA['wq']}
s_load_dwordx2 s[28:29], s[0:1], {KA['w1']}
s_mov_b32 s26, {SZ['wq']}
s_mov_b32 s27, 0x00020000
s_mov_b32 s30, {SZ['w1']}
s_mov_b32 s31, 0x00020000
s_lshl_b32 s15, s2, 14
v_lshlrev_b32 v70, 7, v0
s_lshl_b32 s23, s2, 7
v_add_u32 v71, s23, v0
v_lshrrev_b32 v72, 3, v71
v_mul_u32_u24 v72, 9216, v72
v_bfe_u32 v73, v71, 1, 2
v_mul_u32_u24 v73, {13*128}, v73
v_add_u32 v72, v72, v73
v_and_b32 v73, 1, v71
v_lshl_add_u32 v72, v73, 7, v72
v_lshrrev_b32 v1, 4, v0
v_and_b32 v2, 15, v0
s_lshl_b32 s3, s2, 3
v_add_u32 v1, s3, v1
v_mul_u32_u24 v1, 1152, v1
v_lshl_add_u32 v1, v2, 4, v1
s_mov_b32 s6, {SZ['x']}
s_mov_b32 s7, 0x00020000
s_mov_b32 s10, {SZ['x']}
s_mov_b32 s11, 0x00020000
s_mov_b32 s12, 0x00ff00ff
s_mov_b32 s13, 0x00ff00ff
s_mov_b32 s14, 0xffff0000
s_waitcnt lgkmcnt(0)
""")
    for k in range(4):
        a(f"buffer_load_dwordx4 v[{4+4*k}:{7+4*k}], v1, s[4:7], 0 offen offset:{256*k}")
    for i in range(4):
        a(f"v_mov_b32 v{20+i}, 0")
    a("s_mov_b64 exec, s[12:13]")
    a(f"buffer_load_dwordx4 v[20:23], v1, s[4:7], 0 offen offset:1024")
    a("s_mov_b64 exec, -1")
    a("buffer_load_dword v74, v72, s[28:31], 0 offen")
    a("buffer_load_dword v75, v70, s[24:27], s15 offen")
    a(f"s_add_u32 s15, s15, {256*16384}")
    a("buffer_load_dword v71, v70, s[24:27], s15 offen")
    for i in range(20):
        a(f"v_lshlrev_b32 v{24+2*i}, 16, v{4+i}")
        a(f"v_and_b32 v{25+2*i}, s14, v{4+i}")
    a("v_add_f32 v64, v24, v25")
    a("v_add_f32 v65, v26, v27")
    for i in range(2, 20):
        r = 64 + (i & 1)
        a(f"v_add_f32 v{r}, v{r}, v{24+2*i}")
        a(f"v_add_f32 v{r}, v{r}, v{25+2*i}")
    a("v_add_f32 v64, v64, v65")
    for s in (8, 4, 2, 1):
        a(f"v_add_f32_dpp v64, v64, v64 row_ror:{s} row_mask:0xf bank_mask:0xf")
    a(f"v_mul_f32 v64, {1.0/576.0!r}, v64")
    a("v_mov_b32 v66, 0")
    a("v_mov_b32 v67, 0")
    for i in range(40):
        if i == 32: a("s_mov_b64 exec, s[12:13]")
        r = 66 + (i & 1); tt = 68 + (i & 1)
        a(f"v_sub_f32 v{tt}, v{24+i}, v64")
        a(f"v_fma_f32 v{r}, v{tt}, v{tt}, v{r}")
    a("s_mov_b64 exec, -1")
    a("v_add_f32 v66, v66, v67")
    for s in (8, 4, 2, 1):
        a(f"v_add_f32_dpp v66, v66, v66 row_ror:{s} row_mask:0xf bank_mask:0xf")
    a(f"""
v_mul_f32 v66, {1.0/576.0!r}, v66
v_cvt_pk_bf16_f32 v66, v66, v64
v_and_b32 v64, s14, v66
v_lshlrev_b32 v66, 16, v66
v_add_f32 v66, 0x3727c5ac, v66
v_cvt_pk_bf16_f32 v66, v66, v66
v_lshlrev_b32 v66, 16, v66
v_sqrt_f32 v66, v66
v_cvt_pk_bf16_f32 v66, v66, v66
v_lshlrev_b32 v66, 16, v66
v_rcp_f32 v66, v66
""")
    for i in range(20):
        lo, hi = 24 + 2*i, 25 + 2*i
        a(f"v_sub_f32 v{lo}, v{lo}, v64")
        a(f"v_sub_f32 v{hi}, v{hi}, v64")
        a(f"v_cvt_pk_bf16_f32 v{4+i}, v{lo}, v{hi}")
        a(f"v_lshlrev_b32 v{lo}, 16, v{4+i}")
        a(f"v_and_b32 v{hi}, s14, v{4+i}")
        a(f"v_mul_f32 v{lo}, v{lo}, v66")
        a(f"v_mul_f32 v{hi}, v{hi}, v66")
        a(f"v_cvt_pk_bf16_f32 v{4+i}, v{lo}, v{hi}")
        if i % 4 == 3:
            k = i // 4
            if k == 4: a("s_mov_b64 exec, s[12:13]")
            a(f"buffer_store_dwordx4 v[{4+4*k}:{7+4*k}], v1, s[8:11], 0 offen offset:{256*k}")
    if STAMP:
        a(f"s_memrealtime s[18:19]\ns_waitcnt vmcnt(0) lgkmcnt(0)\ns_memrealtime s[20:21]\ns_waitcnt lgkmcnt(0)\ns_mov_b32 s10, {WS_SRD}\ns_lshl_b32 s22, s2, 4\ns_add_u32 s22, s22, {DBG_OFF}\nv_mov_b32 v4, s16\nv_mov_b32 v5, s18\nv_mov_b32 v6, s20\nv_mov_b32 v7, 0\ns_mov_b64 exec, 1\nbuffer_store_dwordx4 v[4:7], v7, s[8:11], s22 offen")
    a("LN_end:")
    a("s_endpgm")
    body = simple_kernel(K, "\n".join(t))
    return K, body, desc(K, 76, 32, 76), "grid=(256,1,1) block=(128,1,1) lds=0"

def red_kernel():
    K = "red_kernel"
    t = []
    a = t.append
    a(f"""
s_cmp_ge_u32 s2, 576
s_cbranch_scc1 RED_end
{"s_memrealtime s[26:27]" if STAMP else ""}
s_load_dwordx2 s[4:5], s[0:1], {KA['ws']}
s_load_dwordx2 s[8:9], s[0:1], {KA['x']}
s_load_dwordx2 s[12:13], s[0:1], {KA['out']}
v_lshrrev_b32 v1, 6, v0
v_and_b32 v2, 63, v0
v_readfirstlane_b32 s16, v1
s_mov_b32 s6, {WS_USED}
s_mov_b32 s7, 0x00020000
s_mov_b32 s10, {SZ['x']}
s_mov_b32 s11, 0x00020000
s_mov_b32 s14, {SZ['out']}
s_mov_b32 s15, 0x00020000
s_mul_hi_u32 s17, s2, {(1<<32)//36 + 1}
s_mul_i32 s18, s17, 36
s_sub_u32 s18, s2, s18
s_lshl_b32 s18, s18, 2
s_add_u32 s18, s18, s16
s_mul_i32 s19, s17, {NP*PSZ}
s_lshl_b32 s20, s18, 10
s_add_u32 s19, s19, s20
s_add_u32 s19, s19, {PART_OFF}
v_lshlrev_b32 v3, 4, v2
s_lshr_b32 s21, s18, 3
s_and_b32 s22, s18, 7
s_lshl_b32 s22, s22, 4
s_lshl_b32 s23, s17, 7
s_add_u32 s22, s22, s23
s_mul_i32 s22, s22, 1152
s_lshl_b32 s21, s21, 6
s_add_u32 s22, s22, s21
v_and_b32 v4, 15, v2
v_mul_u32_u24 v4, 1152, v4
v_lshrrev_b32 v5, 4, v2
v_lshl_add_u32 v4, v5, 3, v4
s_mov_b32 s24, 0xffff0000
s_waitcnt lgkmcnt(0)
""")
    for p in range(NP):
        a(f"buffer_load_dwordx4 v[{8+4*p}:{11+4*p}], v3, s[4:7], s19 offen")
        if p < NP - 1: a(f"s_add_u32 s19, s19, {PSZ}")
    X = 8 + 4*NP
    a(f"buffer_load_dwordx2 v[{X}:{X+1}], v4, s[8:11], s22 offen")
    a(f"buffer_load_dwordx2 v[{X+2}:{X+3}], v4, s[8:11], s22 offen offset:32")
    SA = X + 4; YA = SA + 8; T = YA + 8
    for p in range(NP):
        acc = SA if p < NP_S else YA
        first = p == 0 or p == NP_S
        for i in range(4):
            src = 8 + 4*p + i
            if first:
                a(f"v_lshlrev_b32 v{acc+2*i}, 16, v{src}")
                a(f"v_and_b32 v{acc+2*i+1}, s24, v{src}")
            else:
                a(f"v_lshlrev_b32 v{T}, 16, v{src}")
                a(f"v_and_b32 v{T+1}, s24, v{src}")
                a(f"v_add_f32 v{acc+2*i}, v{acc+2*i}, v{T}")
                a(f"v_add_f32 v{acc+2*i+1}, v{acc+2*i+1}, v{T+1}")
    def rnd(r):
        a(f"v_cvt_pk_bf16_f32 v{T}, v{r}, v{r+1}")
        a(f"v_lshlrev_b32 v{r}, 16, v{T}")
        a(f"v_and_b32 v{r+1}, s24, v{T}")
    for i in range(4):
        s, y = SA + 2*i, YA + 2*i
        rnd(s); rnd(y)
        for e in range(2):
            a(f"v_mul_f32 v{T+2+e}, 0xbfb8aa3b, v{y+e}")
            a(f"v_exp_f32 v{T+2+e}, v{T+2+e}")
        for e in range(2):
            a(f"v_add_f32 v{T+2+e}, 1.0, v{T+2+e}")
            a(f"v_rcp_f32 v{T+2+e}, v{T+2+e}")
        for e in range(2):
            a(f"v_mul_f32 v{y+e}, v{y+e}, v{T+2+e}")
        rnd(y)
        for e in range(2):
            a(f"v_mul_f32 v{s+e}, v{s+e}, v{y+e}")
        rnd(s)
        a(f"v_lshlrev_b32 v{T+2}, 16, v{X+i}")
        a(f"v_and_b32 v{T+3}, s24, v{X+i}")
        a(f"v_add_f32 v{s}, v{s}, v{T+2}")
        a(f"v_add_f32 v{s+1}, v{s+1}, v{T+3}")
        a(f"v_cvt_pk_bf16_f32 v{X+i}, v{s}, v{s+1}")
    a(f"buffer_store_dwordx2 v[{X}:{X+1}], v4, s[12:15], s22 offen")
    a(f"buffer_store_dwordx2 v[{X+2}:{X+3}], v4, s[12:15], s22 offen offset:32")
    if STAMP:
        a(f"s_memrealtime s[28:29]\ns_waitcnt vmcnt(0) lgkmcnt(0)\ns_memrealtime s[30:31]\ns_waitcnt lgkmcnt(0)\ns_mov_b32 s6, {WS_SRD}\ns_lshl_b32 s22, s2, 4\ns_add_u32 s22, s22, {DBG_OFF + 16384}\nv_mov_b32 v4, s26\nv_mov_b32 v5, s28\nv_mov_b32 v6, s30\nv_mov_b32 v7, 0\ns_mov_b64 exec, 1\nbuffer_store_dwordx4 v[4:7], v7, s[4:7], s22 offen")
    a("RED_end:")
    a("s_endpgm")
    body = simple_kernel(K, "\n".join(t))
    nv = T + 4
    nv = (nv + 3) // 4 * 4
    return K, body, desc(K, nv, 32, nv), "grid=(576,1,1) block=(256,1,1) lds=0"
```

```python
import sys
from mainlib import *
from small import *
import attn

def best_L(fn, hi=11):
    import io, contextlib
    for L in range(hi, 2, -1):
        try:
            with contextlib.redirect_stdout(io.StringIO()):
                fn(L)
            print(fn.__name__, "L =", L)
            return fn(L)
        except AssertionError as e:
            if 'ring WAR' not in str(e) and 'after overwrite' not in str(e): raise
    raise RuntimeError("no L")

def main_kernel(which):
    K = NAME + "_kernel"
    t = f"""
s_cmp_ge_u32 s2, 256
s_cbranch_scc1 MAIN_end
s_load_dwordx2 s[{PK}:{PK+1}], s[0:1], {KA['k']}
s_load_dwordx2 s[{PV}:{PV+1}], s[0:1], {KA['v']}
s_load_dwordx2 s[{PWQ}:{PWQ+1}], s[0:1], {KA['wq']}
s_load_dwordx2 s[{PWO}:{PWO+1}], s[0:1], {KA['wo']}
s_load_dwordx2 s[{PW1}:{PW1+1}], s[0:1], {KA['w1']}
s_load_dwordx2 s[{PW2}:{PW2+1}], s[0:1], {KA['w2']}
s_load_dwordx2 s[{PWS}:{PWS+1}], s[0:1], {KA['ws']}
v_lshrrev_b32 v1, 6, v0
v_readfirstlane_b32 s{sW}, v1
s_and_b32 s{sROLE}, s2, 15
s_lshr_b32 s{sRB}, s2, 4
s_mov_b32 s{SRDA+3}, 0x00020000
s_mov_b32 s{SRDB+3}, 0x00020000
s_mov_b32 s{SWS+2}, {WS_SRD if STAMP else WS_USED}
s_mov_b32 s{SWS+3}, 0x00020000
s_and_b32 s{sC}, s{sW}, 1
s_lshr_b32 s{sR2}, s{sW}, 1
s_waitcnt lgkmcnt(0)
s_mov_b64 s[{SWS}:{SWS+1}], s[{PWS}:{PWS+1}]
s_cmp_ge_u32 s{sROLE}, 12
s_cbranch_scc1 {'TF_start' if 'TF' in which else 'MAIN_end'}
s_cmp_ge_u32 s{sROLE}, 8
s_cbranch_scc1 {'TM_start' if 'TM' in which else 'MAIN_end'}
s_branch {'T3_start' if 'T3' in which else 'MAIN_end'}
MAIN_end:
s_endpgm
"""
    out = simple_kernel(K, t)
    if 'TF' in which: out += [".p2align 6", "TF_start:"] + best_L(attn.prog_TF)
    if 'TM' in which: out += [".p2align 6", "TM_start:"] + best_L(attn.prog_TM)
    if 'T3' in which: out += [".p2align 6", "T3_start:"] + best_L(attn.prog_T3)
    return K, out, desc(K, 512, 100, 256), f"grid=(256,1,1) block=(256,1,1) lds={LDS_BYTES}"

def build(path, which=('TF', 'TM', 'T3')):
    ks = [ln_kernel(), main_kernel(which), red_kernel()]
    hdr = open("cdna_kernels/%s.s.ref" % NAME).read().split("\n")
    hdr = [l for l in hdr if l.startswith(";") and "@launch" not in l and "Override" not in l and "grid=ceil" not in l]
    out = hdr[:]
    for k, b, d, l in ks:
        out.append(f"; @launch kernel={k} {l}")
    out.append('.amdgcn_target "amdgcn-amd-amdhsa--gfx950"')
    out.append(".text")
    for k, b, d, l in ks:
        out += [f".globl {k}", ".p2align 8", f".type {k},@function", f"{k}:"] + b
    out.append('.section .rodata,"a"')
    for k, b, d, l in ks:
        out += [".p2align 6", d]
    open(path, "w").write("\n".join(out) + "\n")

if __name__ == "__main__":
    path = sys.argv[1] if len(sys.argv) > 1 else "k.s"
    which = sys.argv[2].split(",") if len(sys.argv) > 2 else ('TF', 'TM', 'T3')
    build(path, which)
```
